```python
import torch

def _softmax(x, axis=-1):
    return torch.softmax(x, dim=axis)
def _gelu(x):
    return torch.nn.functional.gelu(x, approximate="tanh")
def _silu(x):
    return torch.nn.functional.silu(x)
def _sigmoid(x):
    return torch.sigmoid(x)
def _layernorm(x, axis=-1, eps=1e-5):
    m = x.mean(dim=axis, keepdim=True)
    v = x.var(dim=axis, keepdim=True, unbiased=False)
    return (x - m) / torch.sqrt(v + eps)
def _scatter_add(tgt, idx, src, axis=0):
    return tgt.clone().index_add_(axis, idx, src)
def _segment_sum(src, seg, n):
    out = torch.zeros((n,) + src.shape[1:], dtype=src.dtype)
    return out.index_add_(0, seg, src)
def _pad(x, pw):
    flat = tuple(v for pair in reversed(pw) for v in pair)
    return torch.nn.functional.pad(x, flat)

kernel_name = 'gated_mix__sliding_block_cached__gqa_block_cached__decode'

def setup_inputs():

    _w = (lambda a: (lambda t: t.to(torch.bfloat16) if t.is_floating_point() else t)(torch.as_tensor(a)))
    def _A_setup():
        B, Sq, D = 1, 1, 448
        Hq, Hkv, Sk, Dh = 16, 8, 8192, 256
        assert Hq % Hkv == 0, (Hq, Hkv)
        return {
            "x": _w((lambda *s: torch.randn(*s, dtype=torch.bfloat16) * 0.05)(B, Sq, D)),
            "k_cache": _w((lambda *s: torch.randn(*s, dtype=torch.bfloat16) * 3.2)(B, Hkv, Sk, Dh)),
            "v_cache": _w((lambda *s: torch.randn(*s, dtype=torch.bfloat16) * 0.05)(B, Hkv, Sk, Dh)),
            "wq": _w((lambda *s: torch.randn(*s, dtype=torch.bfloat16) * 3.2)(D, Hq * Dh) * (D ** -0.5)),
            "wo": _w((lambda *s: torch.randn(*s, dtype=torch.bfloat16) * 0.05)(Hq * Dh, D) * ((Hq * Dh) ** -0.5)),
        }
    _A_in = _A_setup()

    def _B_setup():
        B, Sq, D = 1, 1, 448
        Hq, Hkv, Sk, Dh = 16, 8, 8192, 256
        assert Hq % Hkv == 0, (Hq, Hkv)
        return {
            "x": _w((lambda *s: torch.randn(*s, dtype=torch.bfloat16) * 0.05)(B, Sq, D)),
            "k_cache": _w((lambda *s: torch.randn(*s, dtype=torch.bfloat16) * 3.2)(B, Hkv, Sk, Dh)),
            "v_cache": _w((lambda *s: torch.randn(*s, dtype=torch.bfloat16) * 0.05)(B, Hkv, Sk, Dh)),
            "wq": _w((lambda *s: torch.randn(*s, dtype=torch.bfloat16) * 3.2)(D, Hq * Dh) * (D ** -0.5)),
            "wo": _w((lambda *s: torch.randn(*s, dtype=torch.bfloat16) * 0.05)(Hq * Dh, D) * ((Hq * Dh) ** -0.5)),
        }
    _B_in = _B_setup()

    return {
        "A_x": _A_in["x"],
        "A_k_cache": _A_in["k_cache"],
        "A_v_cache": _A_in["v_cache"],
        "A_wq": _A_in["wq"],
        "A_wo": _A_in["wo"],
        "B_x": _B_in["x"],
        "B_k_cache": _B_in["k_cache"],
        "B_v_cache": _B_in["v_cache"],
        "B_wq": _B_in["wq"],
        "B_wo": _B_in["wo"],
        "gate_w": _w((lambda *s: torch.randn(*s, dtype=torch.bfloat16) * 0.1)(448) * 16.0),
    }

def reference(A_x, A_k_cache, A_v_cache, A_wq, A_wo, B_x, B_k_cache, B_v_cache, B_wq, B_wo, gate_w):
    def _A_ref(x, k_cache, v_cache, wq, wo):
        B, Sq, D = x.shape
        Hq, Dh = 16, 256
        Hkv, Sk = k_cache.shape[1], k_cache.shape[2]
        W = min(4096, max(256, Sk // 4))
        rep = Hq // Hkv
        q = (lambda x, *d: x.permute(*d))((x @ wq).reshape(B, Sq, Hq, Dh), 0, 2, 1, 3)
        k = (lambda x, n, axis: torch.repeat_interleave(x, n, dim=axis))(k_cache[:, :, Sk - W:, :], rep, axis=1)
        v = (lambda x, n, axis: torch.repeat_interleave(x, n, dim=axis))(v_cache[:, :, Sk - W:, :], rep, axis=1)
        scores = torch.einsum("bhqd,bhkd->bhqk", q, k) * (Dh ** -0.5)
        p = _softmax(scores, axis=-1)
        o = torch.einsum("bhqk,bhkd->bhqd", p, v)
        return (lambda x, *d: x.permute(*d))(o, 0, 2, 1, 3).reshape(B, Sq, Hq * Dh) @ wo

    def _B_ref(x, k_cache, v_cache, wq, wo):
        B, Sq, D = x.shape
        Hq, Dh = 16, 256
        Hkv = k_cache.shape[1]
        rep = Hq // Hkv
        q = (lambda x, *d: x.permute(*d))((x @ wq).reshape(B, Sq, Hq, Dh), 0, 2, 1, 3)
        k = (lambda x, n, axis: torch.repeat_interleave(x, n, dim=axis))(k_cache, rep, axis=1)
        v = (lambda x, n, axis: torch.repeat_interleave(x, n, dim=axis))(v_cache, rep, axis=1)
        scores = torch.einsum("bhqd,bhkd->bhqk", q, k) * (Dh ** -0.5)
        p = _softmax(scores, axis=-1)
        o = torch.einsum("bhqk,bhkd->bhqd", p, v)
        return (lambda x, *d: x.permute(*d))(o, 0, 2, 1, 3).reshape(B, Sq, Hq * Dh) @ wo

    x = A_x
    g = _sigmoid((x * gate_w).sum(-1, keepdims=True))
    a = _A_ref(x, A_k_cache, A_v_cache, A_wq, A_wo)
    b = _B_ref(x, B_k_cache, B_v_cache, B_wq, B_wo)
    return g * a + (1 - g) * b
```

```python
import re

TRANS = ("v_exp_f32", "v_log_f32", "v_rcp_f32", "v_rsq_f32", "v_sqrt_f32",
         "v_sin_f32", "v_cos_f32", "v_rcp_iflag_f32")
DPP_KEYS = ("row_shl", "row_shr", "row_ror", "quad_perm", "wave_shl", "wave_shr",
            "wave_rol", "wave_ror", "row_bcast", "row_mirror", "row_half_mirror")

VCC = ("vcc", 0), ("vcc", 1)


def _expand(tok):
    tok = tok.strip()
    m = re.fullmatch(r"([vsa])(\d+)", tok)
    if m:
        return [(m.group(1), int(m.group(2)))]
    m = re.fullmatch(r"([vsa])\[(\d+):(\d+)\]", tok)
    if m:
        return [(m.group(1), i) for i in range(int(m.group(2)), int(m.group(3)) + 1)]
    if tok == "vcc":
        return [("vcc", 0), ("vcc", 1)]
    if tok == "vcc_lo":
        return [("vcc", 0)]
    if tok == "vcc_hi":
        return [("vcc", 1)]
    if tok in ("exec", "exec_lo", "exec_hi"):
        return [("exec", 0)]
    if tok == "m0":
        return [("m0", 0)]
    return []


def _split_ops(s):
    out, depth, cur = [], 0, ""
    for ch in s:
        if ch == "[":
            depth += 1
        if ch == "]":
            depth -= 1
        if ch == "," and depth == 0:
            out.append(cur.strip())
            cur = ""
        else:
            cur += ch
    if cur.strip():
        out.append(cur.strip())
    return out


class Ins:
    __slots__ = ("text", "mn", "vw", "vr", "sw", "sr", "valu", "trans", "dpp", "permlane",
                 "lane_rd", "vmem", "wide_store", "states", "unknown", "m0w", "ldsdma",
                 "salu", "anyw", "dot", "srcc", "srcab", "ds")

    def __init__(self):
        self.vw = set(); self.vr = set(); self.sw = set(); self.sr = set()
        self.valu = False; self.trans = False; self.dpp = False; self.permlane = False
        self.lane_rd = False; self.vmem = False; self.wide_store = set(); self.states = 1
        self.unknown = False; self.m0w = False; self.ldsdma = False; self.salu = False
        self.anyw = set()
        self.dot = None
        self.srcc = set(); self.srcab = set(); self.ds = False


def classify(text):
    ins = Ins()
    ins.text = text
    body = text.split(";")[0].split("//")[0].strip()
    parts = body.split(None, 1)
    mn = parts[0]
    ins.mn = mn
    rest = parts[1] if len(parts) > 1 else ""
    ops = _split_ops(rest)
    clean = []
    for i, o in enumerate(ops):
        toks = o.split()
        clean.append(toks[0] if toks else "")
    base = mn.replace("_e32", "").replace("_e64", "").replace("_dpp", "")
    is_dpp = any(k in body for k in DPP_KEYS)

    def regs(tok, kinds):
        return [r for r in _expand(tok) if r[0] in kinds]

    if mn.startswith("v_"):
        ins.valu = True
        ins.trans = base in TRANS
        ins.dpp = is_dpp
        if base.startswith("v_cmp"):
            for r in _expand(clean[0]):
                ins.sw.add(r)
            srcs = clean[1:]
        elif base in ("v_readlane_b32", "v_readfirstlane_b32"):
            ins.lane_rd = True
            for r in _expand(clean[0]):
                ins.sw.add(r)
            srcs = clean[1:]
        elif base.startswith("v_permlane") and "swap" in base:
            ins.permlane = True
            for t in clean[:2]:
                for r in regs(t, "va"):
                    ins.vw.add(r[1]); ins.vr.add(r[1])
            srcs = []
        else:
            for r in regs(clean[0], "va"):
                ins.vw.add(r[1])
            for r in regs(clean[0], "s"):
                ins.sw.add(r)
            srcs = clean[1:]
            if base in ("v_fmac_f32", "v_dot2c_f32_bf16", "v_writelane_b32") or base.startswith("v_pk_fmac"):
                for r in regs(clean[0], "va"):
                    ins.vr.add(r[1])
            if base == "v_cndmask_b32" and len(clean) == 3:
                srcs = srcs + ["vcc"]
            if base in ("v_add_co_u32", "v_sub_co_u32"):
                for r in _expand(clean[1]):
                    ins.sw.add(r)
                srcs = clean[2:]
            if base in ("v_addc_co_u32",):
                for r in _expand(clean[1]):
                    ins.sw.add(r)
                srcs = clean[2:]
        for t in srcs:
            t2 = t.lstrip("-").replace("abs(", "").replace(")", "")
            for r in _expand(t2):
                if r[0] in "va":
                    ins.vr.add(r[1])
                elif r[0] in ("s", "vcc"):
                    ins.sr.add(r)
        if base.startswith("v_dot"):
            ins.dot = base
            if base.startswith("v_dot2c"):
                ab, c = srcs[:2], [clean[0]]
            else:
                ab, c = srcs[:2], srcs[2:3]
            for t in ab:
                for r in regs(t, "va"):
                    ins.srcab.add(r[1])
            for t in c:
                for r in regs(t, "va"):
                    ins.srcc.add(r[1])
    elif mn.startswith(("buffer_", "global_")):
        ins.vmem = True
        lds = " lds" in (" " + body) or mn.startswith("global_load_lds")
        if "load" in mn and not lds:
            for r in regs(clean[0], "va"):
                ins.anyw.add(r[1])
            srcs = clean[1:]
        elif "load" in mn and lds:
            ins.ldsdma = True
            srcs = clean
        elif "store" in mn:
            data = regs(clean[0], "va")
            if len(data) >= 3:
                for r in data:
                    ins.wide_store.add(r[1])
            srcs = clean
        elif "atomic" in mn:
            for r in regs(clean[0], "va"):
                ins.anyw.add(r[1])
            if "cmpswap_x2" in mn:
                for r in regs(clean[0], "va"):
                    ins.wide_store.add(r[1])
            srcs = clean
        else:
            srcs = clean
        for t in srcs:
            for r in _expand(t):
                if r[0] in "va":
                    ins.vr.add(r[1])
                elif r[0] == "s":
                    ins.sr.add(r)
    elif mn.startswith("ds_"):
        ins.ds = True
        if mn.startswith(("ds_read", "ds_bpermute", "ds_permute", "ds_swizzle")):
            for r in regs(clean[0], "va"):
                ins.anyw.add(r[1])
            srcs = clean[1:]
        else:
            srcs = clean
        for t in srcs:
            for r in regs(t, "va"):
                ins.vr.add(r[1])
    elif mn.startswith("s_"):
        ins.salu = True
        if mn == "s_nop":
            ins.states = int(clean[0], 0) + 1
        elif mn.startswith(("s_cmp", "s_branch", "s_cbranch", "s_waitcnt", "s_barrier", "s_sleep",
                            "s_endpgm", "s_setprio", "s_bitcmp")):
            pass
        else:
            for r in _expand(clean[0]):
                if r[0] == "m0":
                    ins.m0w = True
    return ins


class Gen:
    def __init__(self):
        self.lines = []
        self.hist = []
        self.nops_added = 0
        self.count = 0

    def comment(self, s):
        self.lines.append("    ; " + s)

    def raw(self, s):
        self.lines.append(s)

    def _need(self, ins):
        need = 0
        dist = 0
        for p in reversed(self.hist):
            def req(n):
                nonlocal need
                if n - dist > need:
                    need = n - dist
            if p.unknown:
                if (ins.vr or ins.vw) and not ins.salu:
                    req(3)
                if ins.valu and ins.dpp and ins.vr:
                    req(2)
                if ins.permlane:
                    req(2)
                if ins.lane_rd:
                    req(1)
                if ins.valu and ins.sr:
                    req(2)
                if ins.vmem and ins.sr:
                    req(5)
                if ins.valu and not ins.trans:
                    req(1)
                if ins.ldsdma:
                    req(1)
            else:
                if p.valu:
                    if ins.valu and ins.dpp and (p.vw & ins.vr):
                        req(2)
                    if ins.permlane and (p.vw & ins.vr):
                        req(2)
                    if ins.lane_rd and (p.vw & ins.vr):
                        req(1)
                    if ins.valu and (p.sw & ins.sr):
                        req(2)
                    if ins.vmem and (p.sw & ins.sr):
                        req(5)
                    if p.trans and ins.valu and not ins.trans and (p.vw & (ins.vr | ins.vw)):
                        req(1)
                if p.dot:
                    touched = ins.vr | ins.vw
                    if p.vw & touched:
                        if ins.dot == p.dot:
                            if p.vw & ins.srcab:
                                req(3)
                        else:
                            req(3)
                if p.wide_store:
                    if ins.valu and (p.wide_store & ins.vw):
                        req(2)
                    if (p.wide_store & ins.anyw):
                        req(1)
                if p.m0w and ins.ldsdma:
                    req(1)
            dist += p.states
            if dist >= 6:
                break
        return need

    def emit(self, text):
        ins = classify(text)
        n = self._need(ins)
        while n > 0:
            k = min(n, 16)
            nop = classify("s_nop %d" % (k - 1))
            self.lines.append("    s_nop %d" % (k - 1))
            self.hist.append(nop)
            self.nops_added += 1
            n -= k
        self.lines.append("    " + text)
        self.hist.append(ins)
        if len(self.hist) > 16:
            self.hist = self.hist[-16:]
        self.count += 1

    def __call__(self, text):
        for line in text.strip().split("\n"):
            line = line.strip()
            if not line:
                continue
            if line.startswith(";"):
                self.lines.append("    " + line)
                continue
            self.emit(line)

    def label(self, name):
        self.lines.append(name + ":")
        u = Ins()
        u.text = "<label>"; u.mn = "<label>"
        u.unknown = True
        u.states = 0
        self.hist.append(u)

    def text(self):
        return "\n".join(self.lines) + "\n"
```

```python
import sys
from emit import Gen

NAME = "gated_mix__sliding_block_cached__gqa_block_cached__decode"

NWG = 256
NKV = 15
NSLOT = 22
NTASK = 224
LOG2E = "0x3fb8aa3b"
NEGINF = "0xff800000"

QREC = 0x0
PREC = 0x100000
OREC = 0x400000
WS_BYTES = 0x10000000

Q_OFF = 0
NONCE_OFF = 1024
ML_OFF = 1280
QS_OFF = 2048
PART_OFF = 4096
RED_OFF = PART_OFF + NKV * 2048
FIN_OFF = RED_OFF + 4096
WO_OFF = 45056
LDS_BYTES = WO_OFF + 32768

SPIN_LIMIT = 30000

S_WG = 2
S_WAVE = 3
SRD_A = 4
SRD_B = 8
SRD_WS = 12
PTR = 16
P_AX, P_AK, P_AV, P_AWQ, P_AWO, P_BX, P_BK, P_BV, P_BWQ, P_BWO, P_GW, P_OUT, P_DBG, P_WS = \
    [PTR + 2 * i for i in range(14)]
S_P = 48
S_NLO, S_NHI = 94, 95


def sreg(i, n=1):
    return f"s{i}" if n == 1 else f"s[{i}:{i+n-1}]"


def vreg(i, n=1):
    return f"v{i}" if n == 1 else f"v[{i}:{i+n-1}]"


ALLM = "row_mask:0xf bank_mask:0xf"


def build_srd(g, dst, ptr, nbytes_tok, off=None):
    if off is None:
        g(f"s_mov_b32 s{dst}, s{ptr}")
        g(f"s_and_b32 s{dst+1}, s{ptr+1}, 0xffff")
    else:
        g(f"s_add_u32 s{dst}, s{ptr}, {off}")
        g(f"s_addc_u32 s{dst+1}, s{ptr+1}, 0")
        g(f"s_and_b32 s{dst+1}, s{dst+1}, 0xffff")
    g(f"s_mov_b32 s{dst+2}, {nbytes_tok}")
    g(f"s_mov_b32 s{dst+3}, 0x00020000")


def allreduce(g, op, x, tmp, bits=(0, 1, 2, 3, 4, 5)):
    if 0 in bits:
        g(f"{op}_dpp v{x}, v{x}, v{x} quad_perm:[1,0,3,2] {ALLM}")
    if 1 in bits:
        g(f"{op}_dpp v{x}, v{x}, v{x} quad_perm:[2,3,0,1] {ALLM}")
    if 2 in bits:
        g(f"{op}_dpp v{x}, v{x}, v{x} row_ror:4 {ALLM}")
    if 3 in bits:
        g(f"{op}_dpp v{x}, v{x}, v{x} row_ror:8 {ALLM}")
    if 4 in bits:
        g(f"v_mov_b32 v{tmp}, v{x}")
        g(f"v_permlane16_swap_b32 v{x}, v{tmp}")
        g(f"{op} v{x}, v{x}, v{tmp}")
    if 5 in bits:
        g(f"v_mov_b32 v{tmp}, v{x}")
        g(f"v_permlane32_swap_b32 v{x}, v{tmp}")
        g(f"{op} v{x}, v{x}, v{tmp}")


def bf16_round(g, x, tmp):
    g(f"v_cvt_pk_bf16_f32 v{tmp}, v{x}, v{x}")
    g(f"v_lshlrev_b32 v{x}, 16, v{tmp}")


def spin_check(g, cnt, ok_label, retry_label, tag):
    g(f"s_cbranch_scc0 {ok_label}")
    g(f"s_add_u32 s{cnt}, s{cnt}, 1")
    g(f"s_cmp_lt_u32 s{cnt}, {SPIN_LIMIT}")
    g(f"s_cbranch_scc0 {ok_label}")
    g("s_sleep 1")
    g(f"s_branch {retry_label}")


STAMPS = False
DBG_BASE = 0x800000


def stamp(g, pair):
    if not STAMPS:
        return
    g(f"s_memrealtime s[{pair}:{pair+1}]")
    g("s_waitcnt lgkmcnt(0)")


def dump_stamps(g, pairs, slot0, tmpv=124, ta=96, tb=97):
    if not STAMPS:
        return
    g(f"s_lshl_b32 s{ta}, s{S_WG}, 11")
    g(f"s_lshl_b32 s{tb}, s{S_WAVE}, 7")
    g(f"s_add_u32 s{ta}, s{ta}, s{tb}")
    g(f"s_add_u32 s{ta}, s{ta}, {DBG_BASE + 8*slot0}")
    g(f"v_mov_b32 v{tmpv+2}, 0")
    g("s_mov_b64 exec, 1")
    for i, p in enumerate(pairs):
        g(f"v_mov_b32 v{tmpv}, s{p}")
        g(f"v_mov_b32 v{tmpv+1}, s{p+1}")
        g(f"buffer_store_dwordx2 v[{tmpv}:{tmpv+1}], v{tmpv+2}, s[{SRD_WS}:{SRD_WS+3}], s{ta} offen offset:{8*i}")
    g("s_mov_b64 exec, -1")


def lanecode(k):
    return ((k & 1) << 4) | (((k >> 1) & 1) << 3) | (((k >> 2) & 1) << 2)


def gen_prologue(g):
    g.comment("---- prologue: extra workgroups exit ----")
    g(f"s_cmp_ge_u32 s{S_WG}, {NWG}")
    g("s_cbranch_scc1 L_END")
    g(f"s_load_dwordx16 s[16:31], s[0:1], 0")
    g(f"s_load_dwordx8 s[32:39], s[0:1], 64")
    g(f"s_load_dwordx4 s[40:43], s[0:1], 96")
    g("v_lshrrev_b32 v1, 6, v0")
    g("v_and_b32 v0, 63, v0")
    g(f"v_readfirstlane_b32 s{S_WAVE}, v1")
    g("s_waitcnt lgkmcnt(0)")
    build_srd(g, SRD_WS, P_WS, hex(WS_BYTES))
    gen_chunk_params(g)
    g(f"s_cmp_eq_u32 s{S_WAVE}, 0")
    g("s_cbranch_scc1 L_AUX")


def gen_chunk_params(g):
    g(f"s_cmp_ge_u32 s{S_WG}, 56")
    g("s_cbranch_scc1 L_KVB")
    g(f"s_mul_hi_u32 s45, s{S_WG}, 0x24924925")
    g("s_mul_i32 s46, s45, 7")
    g(f"s_sub_u32 s46, s{S_WG}, s46")
    g("s_mul_i32 s47, s46, 292")
    g("s_min_u32 s92, s46, 4")
    g("s_add_u32 s47, s47, s92")
    g("s_add_u32 s47, s47, 6144")
    g("s_cmp_lt_u32 s46, 4")
    g("s_cselect_b32 s92, 8, 7")
    g("s_mov_b32 s93, 19")
    g("s_mov_b32 s101, s45")
    g(f"s_mov_b32 s{SRD_A}, s{P_AK}")
    g(f"s_mov_b32 s{SRD_A+1}, s{P_AK+1}")
    g(f"s_mov_b32 s{SRD_B}, s{P_AV}")
    g(f"s_mov_b32 s{SRD_B+1}, s{P_AV+1}")
    g("s_branch L_KVC")
    g.label("L_KVB")
    g(f"s_sub_u32 s96, s{S_WG}, 56")
    g("s_mul_hi_u32 s45, s96, 0x0A3D70A4")
    g("s_mul_i32 s46, s45, 25")
    g("s_sub_u32 s46, s96, s46")
    g("s_mul_i32 s47, s46, 327")
    g("s_min_u32 s92, s46, 17")
    g("s_add_u32 s47, s47, s92")
    g("s_cmp_lt_u32 s46, 17")
    g("s_cselect_b32 s92, 13, 12")
    g("s_mov_b32 s93, 21")
    g("s_add_u32 s101, s45, 8")
    g(f"s_mov_b32 s{SRD_A}, s{P_BK}")
    g(f"s_mov_b32 s{SRD_A+1}, s{P_BK+1}")
    g(f"s_mov_b32 s{SRD_B}, s{P_BV}")
    g(f"s_mov_b32 s{SRD_B+1}, s{P_BV+1}")
    g.label("L_KVC")


KREG0 = 8
VREG0 = KREG0 + 2 * NSLOT
Q0, Q1 = 96, 98
ACC = 100
SREG_S = [108, 109, 110]
V_KIDX = 111
PVT = [112, 116]
V_T = [2, 3, 4, 5]
V_M, V_L = 120, 121
V_TMP = 122


def kreg(j):
    return KREG0 + 2 * j


def vdreg(j):
    return VREG0 + 2 * j


def gen_kv(g, nt=False, window=14):
    g.comment("================= KV wave =================")
    g(f"s_sub_u32 s44, s{S_WAVE}, 1")
    g("s_mul_i32 s96, s93, s44")
    g("s_add_u32 s47, s47, s96")
    g("s_min_u32 s96, s44, s92")
    g("s_add_u32 s47, s47, s96")
    g("s_cmp_lt_u32 s44, s92")
    g("s_cselect_b32 s96, 1, 0")
    g("s_add_u32 s97, s93, s96")
    g("s_lshl_b32 s98, s45, 22")
    g("s_lshl_b32 s99, s47, 9")
    g("s_add_u32 s98, s98, s99")
    for srd in (SRD_A, SRD_B):
        g(f"s_add_u32 s{srd}, s{srd}, s98")
        g(f"s_addc_u32 s{srd+1}, s{srd+1}, 0")
        g(f"s_and_b32 s{srd+1}, s{srd+1}, 0xffff")
        g(f"s_lshl_b32 s{srd+2}, s97, 9")
        g(f"s_mov_b32 s{srd+3}, 0x00020000")
    g("s_movk_i32 s99, 4096")
    g("s_movk_i32 s100, 8192")
    g("v_lshlrev_b32 v1, 3, v0")
    ntm = " nt" if nt else ""
    loads = []
    for (srd, regf) in ((SRD_A, kreg), (SRD_B, vdreg)):
        for j in range(NSLOT):
            so = "0" if j < 8 else ("s99" if j < 16 else "s100")
            r = regf(j)
            loads.append(f"buffer_load_dwordx2 v[{r}:{r+1}], v1, s[{srd}:{srd+3}], {so} offen offset:{(j % 8) * 512}{ntm}")
    g("s_barrier")
    for l in loads[:window]:
        g(l)
    stamp(g, 46)
    g("v_bfe_u32 v2, v0, 2, 1")
    g("v_lshlrev_b32 v2, 2, v2")
    g("v_bfe_u32 v3, v0, 3, 1")
    g("v_lshlrev_b32 v3, 1, v3")
    g("v_bfe_u32 v4, v0, 4, 1")
    g(f"v_or_b32 v{V_KIDX}, v2, v3")
    g(f"v_or_b32 v{V_KIDX}, v{V_KIDX}, v4")
    for i in range(8):
        g(f"v_mov_b32 v{ACC+i}, 0")
    g("s_barrier")
    for l in loads[window:]:
        g(l)
    g(f"ds_read_b64 v[{Q0}:{Q0+1}], v1 offset:{Q_OFF}")
    g(f"ds_read_b64 v[{Q1}:{Q1+1}], v1 offset:{Q_OFF+512}")
    g("v_mov_b32 v6, 0")
    g(f"ds_read_b64 v[{V_TMP}:{V_TMP+1}], v6 offset:{NONCE_OFF}")
    g("s_waitcnt lgkmcnt(0)")
    g(f"v_readfirstlane_b32 s{S_NLO}, v{V_TMP}")
    g(f"v_readfirstlane_b32 s{S_NHI}, v{V_TMP+1}")
    stamp(g, 100)
    nb = (NSLOT + 7) // 8
    total_loads = 2 * NSLOT
    for b in range(nb):
        slots = list(range(8 * b, min(8 * b + 8, NSLOT)))
        g(f"s_waitcnt vmcnt({total_loads - slots[-1] - 1})")
        qk_batch(g, slots, SREG_S[b])
    for b in range(nb):
        S = SREG_S[b]
        bf16_round(g, S, V_TMP)
        g(f"v_mul_f32 v{S}, 0x3d800000, v{S}")
        g(f"s_sub_u32 s96, s97, {8*b}")
        g(f"v_cmp_gt_u32 vcc, s96, v{V_KIDX}")
        g(f"v_mov_b32 v{V_TMP+1}, {NEGINF}")
        g(f"v_cndmask_b32 v{S}, v{V_TMP+1}, v{S}, vcc")
    g(f"v_max3_f32 v{V_M}, v{SREG_S[0]}, v{SREG_S[1]}, v{SREG_S[2]}")
    allreduce(g, "v_max_f32", V_M, V_TMP, bits=(2, 3, 4))
    for b in range(nb):
        S = SREG_S[b]
        g(f"v_sub_f32 v{S}, v{S}, v{V_M}")
        g(f"v_mul_f32 v{S}, {LOG2E}, v{S}")
        g(f"v_exp_f32 v{S}, v{S}")
    g(f"v_add_f32 v{V_L}, v{SREG_S[0]}, v{SREG_S[1]}")
    g(f"v_add_f32 v{V_L}, v{V_L}, v{SREG_S[2]}")
    allreduce(g, "v_add_f32", V_L, V_TMP, bits=(2, 3, 4))
    for j in range(NSLOT):
        b, k = j >> 3, j & 7
        g(f"v_readlane_b32 s{S_P+2*j}, v{SREG_S[b]}, {lanecode(k)}")
        g(f"v_readlane_b32 s{S_P+2*j+1}, v{SREG_S[b]}, {32 + lanecode(k)}")
    stamp(g, 92)
    for j in range(NSLOT):
        g(f"s_waitcnt vmcnt({NSLOT - 1 - j})")
        a = vdreg(j); T = PVT[j & 1]; sp = S_P + 2 * j
        g(f"v_lshlrev_b32 v{T}, 16, v{a}")
        g(f"v_and_b32 v{T+1}, 0xffff0000, v{a}")
        g(f"v_lshlrev_b32 v{T+2}, 16, v{a+1}")
        g(f"v_and_b32 v{T+3}, 0xffff0000, v{a+1}")
        g(f"v_pk_fma_f32 v[{ACC}:{ACC+1}], v[{T}:{T+1}], s[{sp}:{sp+1}], v[{ACC}:{ACC+1}] op_sel_hi:[1,0,1]")
        g(f"v_pk_fma_f32 v[{ACC+2}:{ACC+3}], v[{T+2}:{T+3}], s[{sp}:{sp+1}], v[{ACC+2}:{ACC+3}] op_sel_hi:[1,0,1]")
        g(f"v_pk_fma_f32 v[{ACC+4}:{ACC+5}], v[{T}:{T+1}], s[{sp}:{sp+1}], v[{ACC+4}:{ACC+5}] op_sel:[0,1,0] op_sel_hi:[1,1,1]")
        g(f"v_pk_fma_f32 v[{ACC+6}:{ACC+7}], v[{T+2}:{T+3}], s[{sp}:{sp+1}], v[{ACC+6}:{ACC+7}] op_sel:[0,1,0] op_sel_hi:[1,1,1]")
    stamp(g, 98)
    g("s_lshl_b32 s96, s44, 11")
    g("v_lshlrev_b32 v2, 4, v0")
    g("v_add_u32 v2, s96, v2")
    g(f"ds_write_b128 v2, v[{ACC}:{ACC+3}] offset:{PART_OFF}")
    g(f"ds_write_b128 v2, v[{ACC+4}:{ACC+7}] offset:{PART_OFF+1024}")
    g("s_lshl_b32 s96, s44, 4")
    g("v_lshrrev_b32 v3, 5, v0")
    g("v_lshlrev_b32 v3, 3, v3")
    g("v_add_u32 v3, s96, v3")
    g(f"ds_write_b64 v3, v[{V_M}:{V_M+1}] offset:{ML_OFF}")
    g("s_waitcnt lgkmcnt(0)")
    g("s_barrier")
    dump_stamps(g, [46, 100, 92, 98], 0)
    g("s_branch L_TAIL")


def qk_batch(g, slots, Sdst):
    n = len(slots)
    for idx, j in enumerate(slots):
        a = kreg(j); b = a + 1; T = V_T[idx % len(V_T)]
        g(f"v_dot2_f32_bf16 v{T}, v{b}, v{Q0+1}, 0")
        g(f"v_dot2_f32_bf16 v{b}, v{b}, v{Q1+1}, 0")
        g(f"v_dot2_f32_bf16 v{b}, v{a}, v{Q1}, v{b}")
        g(f"v_dot2_f32_bf16 v{a}, v{a}, v{Q0}, v{T}")
    for j in slots:
        a = kreg(j); b = a + 1
        g(f"v_permlane32_swap_b32 v{a}, v{b}")
        g(f"v_add_f32 v{a}, v{a}, v{b}")
    us = []
    for i in range(0, n, 2):
        a = kreg(slots[i]); b = kreg(slots[i + 1])
        g(f"v_permlane16_swap_b32 v{a}, v{b}")
        g(f"v_add_f32 v{a}, v{a}, v{b}")
        us.append(a)
    ws = []
    for i in range(0, len(us), 2):
        a = us[i]
        g(f"v_add_f32_dpp v{a}, v{a}, v{a} row_ror:8 row_mask:0xf bank_mask:0x3")
        if i + 1 < len(us):
            b = us[i + 1]
            g(f"v_add_f32_dpp v{a}, v{b}, v{b} row_ror:8 row_mask:0xf bank_mask:0xc")
        ws.append(a)
    a = ws[0]
    g(f"v_add_f32_dpp v{a}, v{a}, v{a} row_shl:4 row_mask:0xf bank_mask:0x5")
    if len(ws) > 1:
        b = ws[1]
        g(f"v_add_f32_dpp v{a}, v{b}, v{b} row_shr:4 row_mask:0xf bank_mask:0xa")
    g(f"v_add_f32_dpp v{Sdst}, v{a}, v{a} quad_perm:[1,0,3,2] {ALLM}")
    g(f"v_add_f32_dpp v{Sdst}, v{Sdst}, v{Sdst} quad_perm:[2,3,0,1] {ALLM}")


if __name__ == "__main__":
    pass
```

```python
import sys
from emit import Gen
from gen import *

WQS_OFF = PART_OFF


def gen_aux(g):
    g.label("L_AUX")
    stamp(g, 56)
    g("s_memrealtime s[96:97]")
    build_srd(g, SRD_B, P_DBG, "256")
    g(f"s_lshr_b32 s44, s{S_WG}, 7")
    g("s_cmp_eq_u32 s44, 0")
    g(f"s_cselect_b32 s{SRD_A}, s{P_AWQ}, s{P_BWQ}")
    g(f"s_cselect_b32 s{SRD_A+1}, s{P_AWQ+1}, s{P_BWQ+1}")
    g(f"s_and_b32 s{SRD_A+1}, s{SRD_A+1}, 0xffff")
    g(f"s_mov_b32 s{SRD_A+2}, 3670016")
    g(f"s_mov_b32 s{SRD_A+3}, 0x00020000")
    build_srd(g, 48, P_AX, "896")
    g("v_lshrrev_b32 v1, 2, v0")
    g("v_and_b32 v2, 3, v0")
    g("v_mul_u32_u24 v7, 0x38000, v1")
    g("v_lshl_add_u32 v7, v2, 4, v7")
    g("v_mul_u32_u24 v8, 56, v1")
    g("v_mov_b32 v28, 0")
    g("s_waitcnt lgkmcnt(0)")
    g("s_or_b32 s96, s96, 1")
    g(f"s_cmp_lg_u32 s{S_WG}, 0")
    g("s_cbranch_scc1 L_NONCE_POLL0")
    g("v_mov_b32 v24, s96")
    g("v_mov_b32 v25, s97")
    g("s_mov_b64 exec, 1")
    g(f"buffer_store_dwordx2 v[24:25], v28, s[{SRD_B}:{SRD_B+3}], 0 offen sc1")
    g("s_mov_b64 exec, -1")
    g.label("L_NONCE_POLL0")
    g(f"buffer_load_dwordx4 v[24:27], v28, s[{SRD_B}:{SRD_B+3}], 0 offen sc1")
    for i in range(7):
        g(f"buffer_load_dwordx2 v[{10+2*i}:{11+2*i}], v8, s[48:51], 0 offen offset:{8*i}")
    g(f"s_and_b32 s46, s{S_WG}, 127")
    g("s_lshl_b32 s46, s46, 6")
    for t in range(28):
        g(f"s_mov_b32 m0, {WQS_OFF + 1024*t}")
        g(f"buffer_load_dwordx4 v7, s[{SRD_A}:{SRD_A+3}], s46 offen nt lds")
        if t < 27:
            g("s_add_u32 s46, s46, 8192")
    g("s_barrier")
    g("v_lshlrev_b32 v9, 4, v0")
    g("s_waitcnt vmcnt(0)")
    stamp(g, 58)
    g("s_mov_b32 s53, 0")
    g.label("L_NONCE_CHK")
    g("v_readfirstlane_b32 s98, v24")
    g("v_readfirstlane_b32 s99, v25")
    g("s_cmp_eq_u64 s[98:99], 0")
    g("s_cbranch_scc0 L_NONCE_OK")
    g("s_add_u32 s53, s53, 1")
    g(f"s_cmp_lt_u32 s53, {SPIN_LIMIT}")
    g("s_cbranch_scc0 L_NONCE_OK")
    g(f"buffer_load_dwordx4 v[24:27], v28, s[{SRD_B}:{SRD_B+3}], 0 offen sc1")
    g("s_waitcnt vmcnt(0)")
    g("s_branch L_NONCE_CHK")
    g.label("L_NONCE_OK")
    g(f"s_mov_b32 s{S_NLO}, s98")
    g(f"s_mov_b32 s{S_NHI}, s99")
    g(f"v_mov_b32 v24, s{S_NLO}")
    g(f"v_mov_b32 v25, s{S_NHI}")
    g(f"ds_write_b64 v28, v[24:25] offset:{NONCE_OFF}")
    for i in range(8):
        g(f"v_mov_b32 v{80+i}, 0")
    depth = 4
    for t in range(min(depth, 28)):
        W = 32 + 4 * (t % depth)
        g(f"ds_read_b128 v[{W}:{W+3}], v9 offset:{WQS_OFF + 1024*t}")
    for t in range(28):
        W = 32 + 4 * (t % depth)
        outstanding = min(depth, 28 - t)
        g(f"s_waitcnt lgkmcnt({outstanding - 1})")
        xd = 10 + (t >> 1)
        if t & 1:
            g(f"v_and_b32 v90, 0xffff0000, v{xd}")
        else:
            g(f"v_lshlrev_b32 v90, 16, v{xd}")
        for k in range(4):
            g(f"v_lshlrev_b32 v{48+2*k}, 16, v{W+k}")
            g(f"v_and_b32 v{49+2*k}, 0xffff0000, v{W+k}")
        if t + depth < 28:
            g(f"ds_read_b128 v[{W}:{W+3}], v9 offset:{WQS_OFF + 1024*(t+depth)}")
        for k in range(4):
            g(f"v_pk_fma_f32 v[{80+2*k}:{81+2*k}], v[{48+2*k}:{49+2*k}], v[90:91], v[{80+2*k}:{81+2*k}] op_sel_hi:[1,0,1]")
    g("v_lshlrev_b32 v3, 7, v1")
    g("v_lshl_add_u32 v3, v2, 5, v3")
    g(f"ds_write_b128 v3, v[80:83] offset:{QS_OFF}")
    g(f"ds_write_b128 v3, v[84:87] offset:{QS_OFF+16}")
    g("v_and_b32 v4, 15, v0")
    g("v_lshlrev_b32 v5, 3, v4")
    g("s_waitcnt lgkmcnt(0)")
    for i in range(16):
        g(f"ds_read_b64 v[{32+2*i}:{33+2*i}], v5 offset:{QS_OFF + 128*i}")
    g("s_waitcnt lgkmcnt(0)")
    for step in (8, 4, 2, 1):
        for i in range(step):
            g(f"v_pk_add_f32 v[{32+2*i}:{33+2*i}], v[{32+2*i}:{33+2*i}], v[{32+2*(i+step)}:{33+2*(i+step)}]")
    g("v_cvt_pk_bf16_f32 v64, v32, v33")
    g("v_mov_b32 v65, 0")
    g(f"v_mov_b32 v66, s{S_NLO}")
    g(f"v_mov_b32 v67, s{S_NHI}")
    g(f"s_lshl_b32 s46, s{S_WG}, 8")
    if QREC:
        g(f"s_add_u32 s46, s46, {QREC}")
    g("s_mov_b32 exec_lo, 0xffff")
    g("s_mov_b32 exec_hi, 0")
    g(f"buffer_store_dwordx4 v[64:67], v9, s[{SRD_WS}:{SRD_WS+3}], s46 offen sc1")
    g("s_mov_b64 exec, -1")
    stamp(g, 60)
    g("s_lshl_b32 s52, s101, 12")
    if QREC:
        g(f"s_add_u32 s52, s52, {QREC}")
    g("s_mov_b32 s53, 0")
    g.label("L_QPOLL")
    for j in range(4):
        g(f"buffer_load_dwordx4 v[{32+4*j}:{35+4*j}], v9, s[{SRD_WS}:{SRD_WS+3}], s52 offen offset:{1024*j} sc1")
    g("s_waitcnt vmcnt(0)")
    for j in range(4):
        d = 48 if j == 0 else 49
        g(f"v_xor_b32 v{d}, s{S_NLO}, v{34+4*j}")
        g(f"v_xor_b32 v50, s{S_NHI}, v{35+4*j}")
        g(f"v_or_b32 v{d}, v{d}, v50")
        if j:
            g("v_or_b32 v48, v48, v49")
    g("v_cmp_ne_u32 vcc, 0, v48")
    g("s_cmp_lg_u64 vcc, 0")
    spin_check(g, 53, "L_QOK", "L_QPOLL", "q")
    g.label("L_QOK")
    stamp(g, 62)
    g("v_lshlrev_b32 v5, 2, v0")
    for j in range(4):
        g(f"ds_write_b32 v5, v{32+4*j} offset:{Q_OFF + 256*j}")
    g("s_waitcnt lgkmcnt(0)")
    g("s_barrier")
    g(f"s_cmp_ge_u32 s{S_WG}, {NTASK}")
    g("s_cbranch_scc1 L_AUX_NOWO")
    g(f"s_cmp_ge_u32 s{S_WG}, 112")
    g("s_cselect_b32 s44, 1, 0")
    g("s_mul_i32 s45, s44, 112")
    g(f"s_sub_u32 s45, s{S_WG}, s45")
    g("s_mul_hi_u32 s46, s45, 0x24924925")
    g("s_mul_i32 s47, s46, 7")
    g("s_sub_u32 s47, s45, s47")
    g("s_cmp_eq_u32 s44, 0")
    g(f"s_cselect_b32 s{SRD_A}, s{P_AWO}, s{P_BWO}")
    g(f"s_cselect_b32 s{SRD_A+1}, s{P_AWO+1}, s{P_BWO+1}")
    g(f"s_and_b32 s{SRD_A+1}, s{SRD_A+1}, 0xffff")
    g(f"s_mov_b32 s{SRD_A+2}, 3670016")
    g(f"s_mov_b32 s{SRD_A+3}, 0x00020000")
    g("s_mul_i32 s52, s46, 229376")
    g("s_lshl_b32 s53, s47, 7")
    g("s_add_u32 s52, s52, s53")
    g("v_lshrrev_b32 v1, 3, v0")
    g("v_mul_u32_u24 v7, 896, v1")
    g("v_and_b32 v2, 7, v0")
    g("v_lshl_add_u32 v7, v2, 4, v7")
    for i in range(32):
        g(f"s_mov_b32 m0, {WO_OFF + 1024*i}")
        g(f"buffer_load_dwordx4 v7, s[{SRD_A}:{SRD_A+3}], s52 offen nt lds")
        if i < 31:
            g("s_add_u32 s52, s52, 7168")
    g.label("L_AUX_NOWO")
    g(f"s_cmp_lt_u32 s{S_WG}, {NTASK}")
    g("s_cbranch_scc1 L_AUX_NOGATE")
    g(f"s_cmp_ge_u32 s{S_WG}, {NTASK+7}")
    g("s_cbranch_scc1 L_AUX_NOGATE")
    build_srd(g, 52, P_GW, "896")
    g("v_lshlrev_b32 v5, 1, v0")
    for i in range(7):
        g(f"buffer_load_ushort v{32+i}, v5, s[48:51], 0 offen offset:{128*i}")
        g(f"buffer_load_ushort v{40+i}, v5, s[52:55], 0 offen offset:{128*i}")
    g("v_mov_b32 v48, 0")
    g("s_waitcnt vmcnt(0)")
    for i in range(7):
        g(f"v_lshlrev_b32 v{32+i}, 16, v{32+i}")
        g(f"v_lshlrev_b32 v{40+i}, 16, v{40+i}")
        g(f"v_mul_f32 v{32+i}, v{32+i}, v{40+i}")
        bf16_round(g, 32 + i, 49)
        g(f"v_add_f32 v48, v48, v{32+i}")
    allreduce(g, "v_add_f32", 48, 49)
    bf16_round(g, 48, 49)
    g(f"v_mul_f32 v48, {LOG2E}, v48")
    g("v_sub_f32 v48, 0, v48")
    g("v_exp_f32 v48, v48")
    g("v_add_f32 v48, 1.0, v48")
    g("v_rcp_f32 v48, v48")
    bf16_round(g, 48, 49)
    g("v_readfirstlane_b32 s93, v48")
    g.label("L_AUX_NOGATE")
    g("s_waitcnt vmcnt(0)")
    stamp(g, 64)
    g("s_barrier")
    stamp(g, 66)
    dump_stamps(g, [56, 58, 60, 62, 64, 66], 0)


def pk_sel(s):
    if s % 2 == 0:
        return f"s[{s}:{s+1}]", "op_sel_hi:[1,0,1]"
    return f"s[{s-1}:{s}]", "op_sel:[0,1,0] op_sel_hi:[1,1,1]"


def gen_tail(g):
    g.label("L_TAIL")
    g(f"s_cmp_ge_u32 s{S_WAVE}, 4")
    g("s_cbranch_scc1 L_NOCOMB")
    g(f"s_lshr_b32 s44, s{S_WAVE}, 1")
    g(f"s_and_b32 s45, s{S_WAVE}, 1")
    g("v_min_u32 v1, 14, v0")
    g("v_lshlrev_b32 v1, 4, v1")
    g("s_lshl_b32 s46, s44, 3")
    g("v_add_u32 v1, s46, v1")
    g(f"ds_read_b64 v[2:3], v1 offset:{ML_OFF}")
    g("s_lshl_b32 s46, s45, 9")
    g("s_lshl_b32 s47, s44, 10")
    g("s_add_u32 s46, s46, s47")
    g("v_lshlrev_b32 v7, 3, v0")
    g("v_add_u32 v7, s46, v7")
    for i in range(NKV):
        g(f"ds_read_b64 v[{16+2*i}:{17+2*i}], v7 offset:{PART_OFF + 2048*i}")
    g("s_waitcnt lgkmcnt(15)")
    g("v_cmp_gt_u32 vcc, 15, v0")
    g("v_mov_b32 v4, v2")
    allreduce(g, "v_max_f32", 4, 5)
    g("v_sub_f32 v5, v2, v4")
    g(f"v_mul_f32 v5, {LOG2E}, v5")
    g("v_exp_f32 v5, v5")
    g("v_cndmask_b32 v5, 0, v5, vcc")
    g("v_mul_f32 v6, v5, v3")
    allreduce(g, "v_add_f32", 6, 12)
    for i in range(NKV):
        g(f"v_readlane_b32 s{48+i}, v5, {i}")
    g("s_waitcnt lgkmcnt(0)")
    g("v_mul_f32 v8, s48, v16")
    g("v_mul_f32 v9, s48, v17")
    for i in range(1, NKV):
        g(f"v_fma_f32 v8, v{16+2*i}, s{48+i}, v8")
        g(f"v_fma_f32 v9, v{17+2*i}, s{48+i}, v9")
    g(f"v_mov_b32 v10, s{S_NLO}")
    g(f"v_mov_b32 v11, s{S_NHI}")
    g("v_lshlrev_b32 v13, 4, v0")
    g(f"s_lshl_b32 s47, s{S_WG}, 13")
    g(f"s_add_u32 s47, s47, {PREC}")
    g("s_lshl_b32 s46, s44, 11")
    g("s_add_u32 s52, s47, s46")
    g("s_lshl_b32 s46, s45, 10")
    g("s_add_u32 s52, s52, s46")
    g(f"buffer_store_dwordx4 v[8:11], v13, s[{SRD_WS}:{SRD_WS+3}], s52 offen sc1")
    g("s_cmp_lg_u32 s45, 0")
    g("s_cbranch_scc1 L_NOCOMB")
    g("v_mov_b32 v16, v4")
    g("v_mov_b32 v17, v6")
    g(f"v_mov_b32 v18, s{S_NLO}")
    g(f"v_mov_b32 v19, s{S_NHI}")
    g("s_lshl_b32 s46, s44, 4")
    g("s_add_u32 s52, s47, s46")
    g("s_add_u32 s52, s52, 4096")
    g("s_mov_b64 exec, 1")
    g(f"buffer_store_dwordx4 v[16:19], v13, s[{SRD_WS}:{SRD_WS+3}], s52 offen sc1")
    g("s_mov_b64 exec, -1")
    g.label("L_NOCOMB")
    stamp(g, 88)
    g(f"s_cmp_lt_u32 s{S_WG}, {NTASK}")
    g("s_cbranch_scc1 L_TASK")
    g(f"s_cmp_lt_u32 s{S_WG}, {NTASK+7}")
    g("s_cbranch_scc1 L_RED")
    g("s_branch L_END")


def gen_task(g):
    g.label("L_TASK")
    g(f"s_cmp_ge_u32 s{S_WG}, 112")
    g("s_cselect_b32 s44, 1, 0")
    g("s_mul_i32 s45, s44, 112")
    g(f"s_sub_u32 s45, s{S_WG}, s45")
    g("s_mul_hi_u32 s46, s45, 0x24924925")
    g("s_mul_i32 s47, s46, 7")
    g("s_sub_u32 s47, s45, s47")
    g("s_lshr_b32 s52, s46, 1")
    g("s_and_b32 s53, s46, 1")
    g("s_mul_i32 s54, s52, 7")
    g("s_mul_i32 s55, s52, 25")
    g("s_add_u32 s55, s55, 56")
    g("s_cmp_eq_u32 s44, 0")
    g("s_cselect_b32 s54, s54, s55")
    g("s_cselect_b32 s55, 7, 25")
    g("s_lshl_b32 s56, s54, 13")
    g(f"s_add_u32 s56, s56, {PREC}")
    g("s_lshl_b32 s57, s55, 13")
    g(f"s_add_u32 s{SRD_A}, s{P_WS}, s56")
    g(f"s_addc_u32 s{SRD_A+1}, s{P_WS+1}, 0")
    g(f"s_and_b32 s{SRD_A+1}, s{SRD_A+1}, 0xffff")
    g(f"s_mov_b32 s{SRD_A+2}, s57")
    g(f"s_mov_b32 s{SRD_A+3}, 0x00020000")
    g("v_lshrrev_b32 v1, 3, v0")
    g("v_lshlrev_b32 v2, 13, v1")
    g("v_and_b32 v3, 7, v0")
    g("v_lshl_add_u32 v3, v3, 4, v2")
    g("s_lshl_b32 s57, s53, 11")
    g(f"s_lshl_b32 s58, s{S_WAVE}, 7")
    g("s_add_u32 s57, s57, s58")
    g("s_lshl_b32 s58, s53, 4")
    g("s_add_u32 s58, s58, 4096")
    for j in range(4):
        g(f"s_sub_i32 s59, s55, {8*j}")
        g(f"v_cmp_gt_i32 s[{60+2*j}:{61+2*j}], s59, v1")
    g("s_mov_b32 s59, 0")
    g.label("L_TPOLL")
    for j in range(4):
        g(f"s_add_u32 s68, s58, {j*65536}")
        g(f"buffer_load_dwordx4 v[{12+8*j}:{15+8*j}], v2, s[{SRD_A}:{SRD_A+3}], s68 offen sc1")
    g("s_mov_b64 s[70:71], 0")
    g("s_waitcnt vmcnt(0)")
    for j in range(4):
        g(f"v_xor_b32 v44, s{S_NLO}, v{14+8*j}")
        g(f"v_xor_b32 v45, s{S_NHI}, v{15+8*j}")
        g("v_or_b32 v44, v44, v45")
        g("v_cmp_ne_u32 vcc, 0, v44")
        g(f"s_and_b64 s[72:73], vcc, s[{60+2*j}:{61+2*j}]")
        g("s_or_b64 s[70:71], s[70:71], s[72:73]")
    g("s_cmp_lg_u64 s[70:71], 0")
    spin_check(g, 59, "L_TML_OK", "L_TPOLL", "ml")
    g.label("L_TML_OK")
    stamp(g, 90)
    for j in range(4):
        g(f"s_add_u32 s68, s57, {j*65536}")
        g(f"buffer_load_dwordx4 v[{8+8*j}:{11+8*j}], v3, s[{SRD_A}:{SRD_A+3}], s68 offen sc1")
    g("s_mov_b64 s[70:71], 0")
    g("s_waitcnt vmcnt(0)")
    for j in range(4):
        g(f"v_xor_b32 v44, s{S_NLO}, v{10+8*j}")
        g(f"v_xor_b32 v45, s{S_NHI}, v{11+8*j}")
        g("v_or_b32 v44, v44, v45")
        g("v_cmp_ne_u32 vcc, 0, v44")
        g(f"s_and_b64 s[72:73], vcc, s[{60+2*j}:{61+2*j}]")
        g("s_or_b64 s[70:71], s[70:71], s[72:73]")
    g("s_cmp_lg_u64 s[70:71], 0")
    spin_check(g, 59, "L_TOK", "L_TPOLL", "pl")
    g.label("L_TOK")
    stamp(g, 96)
    g(f"v_mov_b32 v44, {NEGINF}")
    for j in range(4):
        g(f"v_cndmask_b32 v{12+8*j}, v44, v{12+8*j}, s[{60+2*j}:{61+2*j}]")
    g("v_max3_f32 v45, v12, v20, v28")
    g("v_max_f32 v45, v45, v36")
    allreduce(g, "v_max_f32", 45, 46, bits=(3, 4, 5))
    for j in range(4):
        g(f"v_sub_f32 v{46+j}, v{12+8*j}, v45")
        g(f"v_mul_f32 v{46+j}, {LOG2E}, v{46+j}")
        g(f"v_exp_f32 v{46+j}, v{46+j}")
    g("v_mul_f32 v50, v46, v8")
    g("v_mul_f32 v51, v46, v9")
    g("v_mul_f32 v52, v46, v13")
    for j in range(1, 4):
        g(f"v_fma_f32 v50, v{46+j}, v{8+8*j}, v50")
        g(f"v_fma_f32 v51, v{46+j}, v{9+8*j}, v51")
        g(f"v_fma_f32 v52, v{46+j}, v{13+8*j}, v52")
    for x in (50, 51, 52):
        allreduce(g, "v_add_f32", x, 53, bits=(3, 4, 5))
    g("v_rcp_f32 v52, v52")
    g("v_mul_f32 v50, v50, v52")
    g("v_mul_f32 v51, v51, v52")
    bf16_round(g, 50, 53)
    bf16_round(g, 51, 53)
    g(f"s_lshl_b32 s68, s{S_WAVE}, 11")
    g("v_lshlrev_b32 v54, 1, v0")
    g("v_add_u32 v54, s68, v54")
    for d in range(16):
        g(f"ds_read_u16 v{56+d}, v54 offset:{WO_OFF + 128*d}")
    for i in range(8):
        g(f"v_readlane_b32 s{72+2*i}, v50, {i}")
        g(f"v_readlane_b32 s{73+2*i}, v51, {i}")
    g("v_mov_b32 v55, 0")
    for d in range(16):
        g(f"s_waitcnt lgkmcnt({15-d})")
        g(f"v_lshlrev_b32 v{56+d}, 16, v{56+d}")
        g(f"v_fmac_f32 v55, s{72+d}, v{56+d}")
    g(f"s_lshl_b32 s68, s{S_WAVE}, 8")
    g("v_lshlrev_b32 v54, 2, v0")
    g("v_add_u32 v53, s68, v54")
    g(f"ds_write_b32 v53, v55 offset:{RED_OFF}")
    g("s_waitcnt lgkmcnt(0)")
    g("s_barrier")
    stamp(g, 98)
    dump_stamps(g, [88, 90, 96, 98], 8, tmpv=100, ta=68, tb=69)
    g(f"s_cmp_lg_u32 s{S_WAVE}, 0")
    g("s_cbranch_scc1 L_END")
    for i in range(16):
        g(f"ds_read_b32 v{56+i}, v54 offset:{RED_OFF + 256*i}")
    g("s_waitcnt lgkmcnt(0)")
    for step in (8, 4, 2, 1):
        for i in range(step):
            g(f"v_add_f32 v{56+i}, v{56+i}, v{56+i+step}")
    g("v_mov_b32 v60, v56")
    g(f"v_mov_b32_dpp v61, v56 quad_perm:[1,0,3,2] {ALLM}")
    g(f"v_mov_b32 v62, s{S_NLO}")
    g(f"v_mov_b32 v63, s{S_NHI}")
    g("v_lshlrev_b32 v54, 3, v0")
    g("s_lshl_b32 s68, s47, 14")
    g("s_lshl_b32 s69, s44, 4")
    g("s_add_u32 s69, s69, s46")
    g("s_lshl_b32 s69, s69, 9")
    g("s_add_u32 s68, s68, s69")
    g(f"s_add_u32 s68, s68, {OREC}")
    g("s_mov_b32 exec_lo, 0x55555555")
    g("s_mov_b32 exec_hi, 0x55555555")
    g(f"buffer_store_dwordx4 v[60:63], v54, s[{SRD_WS}:{SRD_WS+3}], s68 offen sc1")
    g("s_mov_b64 exec, -1")
    g("s_branch L_END")


def gen_reducer(g):
    g.label("L_RED")
    g(f"s_sub_u32 s44, s{S_WG}, {NTASK}")
    g("s_lshl_b32 s45, s44, 14")
    g(f"s_lshl_b32 s46, s{S_WAVE}, 10")
    g("s_add_u32 s45, s45, s46")
    g(f"s_add_u32 s45, s45, {OREC}")
    g("v_lshlrev_b32 v1, 4, v0")
    g("s_mov_b32 s47, 0")
    g.label("L_RPOLL")
    g(f"buffer_load_dwordx4 v[4:7], v1, s[{SRD_WS}:{SRD_WS+3}], s45 offen sc1")
    g("s_waitcnt vmcnt(0)")
    g(f"v_xor_b32 v8, s{S_NLO}, v6")
    g(f"v_xor_b32 v9, s{S_NHI}, v7")
    g("v_or_b32 v8, v8, v9")
    g("v_cmp_ne_u32 vcc, 0, v8")
    g("s_cmp_lg_u64 vcc, 0")
    spin_check(g, 47, "L_ROK", "L_RPOLL", "r")
    g.label("L_ROK")
    stamp(g, 90)
    allreduce(g, "v_add_f32", 4, 8, bits=(5,))
    allreduce(g, "v_add_f32", 5, 8, bits=(5,))
    g("v_and_b32 v2, 31, v0")
    g("v_lshlrev_b32 v2, 3, v2")
    g(f"s_lshl_b32 s46, s{S_WAVE}, 8")
    g("v_add_u32 v3, s46, v2")
    g(f"ds_write_b64 v3, v[4:5] offset:{FIN_OFF}")
    g("s_waitcnt lgkmcnt(0)")
    g("s_barrier")
    stamp(g, 96)
    dump_stamps(g, [88, 90, 96], 8, tmpv=100, ta=68, tb=69)
    g(f"s_cmp_lg_u32 s{S_WAVE}, 0")
    g("s_cbranch_scc1 L_END")
    for i in range(16):
        g(f"ds_read_b64 v[{8+2*i}:{9+2*i}], v2 offset:{FIN_OFF + 256*i}")
    g("s_waitcnt lgkmcnt(0)")
    for base in (8, 24):
        for step in (4, 2, 1):
            for i in range(step):
                g(f"v_pk_add_f32 v[{base+2*i}:{base+2*i+1}], v[{base+2*i}:{base+2*i+1}], v[{base+2*(i+step)}:{base+2*(i+step)+1}]")
    g("v_mov_b32 v40, s93")
    g("v_sub_f32 v41, 1.0, v40")
    bf16_round(g, 41, 42)
    for (a, b) in ((8, 24), (9, 25)):
        bf16_round(g, a, 42)
        bf16_round(g, b, 42)
        g(f"v_mul_f32 v{a}, v40, v{a}")
        bf16_round(g, a, 42)
        g(f"v_mul_f32 v{b}, v41, v{b}")
        bf16_round(g, b, 42)
        g(f"v_add_f32 v{a}, v{a}, v{b}")
    g("v_cvt_pk_bf16_f32 v43, v8, v9")
    build_srd(g, SRD_A, P_OUT, "896")
    g("s_lshl_b32 s46, s44, 7")
    g("v_lshlrev_b32 v3, 2, v0")
    g("s_mov_b32 exec_lo, -1")
    g("s_mov_b32 exec_hi, 0")
    g(f"buffer_store_dword v43, v3, s[{SRD_A}:{SRD_A+3}], s46 offen")
    g("s_mov_b64 exec, -1")


HEADER = """; Kernarg layout for this problem (112 bytes, ptrs only, base s[0:1]):
; @launch grid=({nwg},1,1) block=(1024,1,1) lds={lds}
;
.amdgcn_target "amdgcn-amd-amdhsa--gfx950"
.text
.globl {name}_kernel
.p2align 8
.type {name}_kernel,@function
{name}_kernel:
"""

FOOTER = """L_END:
    s_endpgm
.section .rodata,"a"
.p2align 6
.amdhsa_kernel {name}_kernel
  .amdhsa_next_free_vgpr 128
  .amdhsa_next_free_sgpr 102
  .amdhsa_accum_offset 128
  .amdhsa_group_segment_fixed_size 0
  .amdhsa_kernarg_size 112
  .amdhsa_user_sgpr_count 2
  .amdhsa_user_sgpr_kernarg_segment_ptr 1
  .amdhsa_system_sgpr_workgroup_id_x 1
.end_amdhsa_kernel
"""


def build(nt=True, window=14):
    g = Gen()
    gen_prologue(g)
    gen_kv(g, nt=nt, window=window)
    gen_aux(g)
    gen_tail(g)
    gen_task(g)
    gen_reducer(g)
    txt = HEADER.format(nwg=NWG, lds=LDS_BYTES, name=NAME) + g.text() + FOOTER.format(name=NAME)
    return txt, g


if __name__ == "__main__":
    out = sys.argv[1] if len(sys.argv) > 1 else f"cdna_kernels/{NAME}.s"
    if "stamps" in sys.argv[2:]:
        import gen
        gen.STAMPS = True
        globals()["STAMPS"] = True
    win = [int(a[1:]) for a in sys.argv[2:] if a.startswith("w") and a[1:].isdigit()]
    txt, g = build(nt=("nont" not in sys.argv[2:]), window=(win[0] if win else 14))
    open(out, "w").write(txt)
    print(f"wrote {out}: {g.count} instructions, {g.nops_added} nops inserted")
```

```python
import sys
from emit import Gen

NAME = "gated_mix__sliding_block_cached__gqa_block_cached__decode"

NWG = 256
NKV = 15
NSLOT = 23
NWG_A = 64
NTASK = 224
LOG2E = "0x3fb8aa3b"
NEGINF = "0xff800000"

QREC = 0x0
PREC = 0x100000
OREC = 0x400000
WS_BYTES = 0x10000000

Q_OFF = 0
NONCE_OFF = 1024
ML_OFF = 1280
QS_OFF = 2048
PART_OFF = 4096
RED_OFF = PART_OFF + NKV * 2048
FIN_OFF = RED_OFF + 4096
WO_OFF = 45056
LDS_BYTES = WO_OFF + 32768

SPIN_LIMIT = 30000

S_WG = 2
S_WAVE = 3
SRD_A = 4
SRD_B = 8
SRD_WS = 12
PTR = 16
P_AX, P_AK, P_AV, P_AWQ, P_AWO, P_BX, P_BK, P_BV, P_BWQ, P_BWO, P_GW, P_OUT, P_DBG, P_WS = \
    [PTR + 2 * i for i in range(14)]
S_P = 48
S_NLO, S_NHI = 94, 95


def sreg(i, n=1):
    return f"s{i}" if n == 1 else f"s[{i}:{i+n-1}]"


def vreg(i, n=1):
    return f"v{i}" if n == 1 else f"v[{i}:{i+n-1}]"


ALLM = "row_mask:0xf bank_mask:0xf"


def build_srd(g, dst, ptr, nbytes_tok, off=None):
    if off is None:
        g(f"s_mov_b32 s{dst}, s{ptr}")
        g(f"s_and_b32 s{dst+1}, s{ptr+1}, 0xffff")
    else:
        g(f"s_add_u32 s{dst}, s{ptr}, {off}")
        g(f"s_addc_u32 s{dst+1}, s{ptr+1}, 0")
        g(f"s_and_b32 s{dst+1}, s{dst+1}, 0xffff")
    g(f"s_mov_b32 s{dst+2}, {nbytes_tok}")
    g(f"s_mov_b32 s{dst+3}, 0x00020000")


def allreduce(g, op, x, tmp, bits=(0, 1, 2, 3, 4, 5)):
    if 0 in bits:
        g(f"{op}_dpp v{x}, v{x}, v{x} quad_perm:[1,0,3,2] {ALLM}")
    if 1 in bits:
        g(f"{op}_dpp v{x}, v{x}, v{x} quad_perm:[2,3,0,1] {ALLM}")
    if 2 in bits:
        g(f"{op}_dpp v{x}, v{x}, v{x} row_ror:4 {ALLM}")
    if 3 in bits:
        g(f"{op}_dpp v{x}, v{x}, v{x} row_ror:8 {ALLM}")
    if 4 in bits:
        g(f"v_mov_b32 v{tmp}, v{x}")
        g(f"v_permlane16_swap_b32 v{x}, v{tmp}")
        g(f"{op} v{x}, v{x}, v{tmp}")
    if 5 in bits:
        g(f"v_mov_b32 v{tmp}, v{x}")
        g(f"v_permlane32_swap_b32 v{x}, v{tmp}")
        g(f"{op} v{x}, v{x}, v{tmp}")


def bf16_round(g, x, tmp):
    g(f"v_cvt_pk_bf16_f32 v{tmp}, v{x}, v{x}")
    g(f"v_lshlrev_b32 v{x}, 16, v{tmp}")


def spin_check(g, cnt, ok_label, retry_label, tag):
    g(f"s_cbranch_scc0 {ok_label}")
    g(f"s_add_u32 s{cnt}, s{cnt}, 1")
    g(f"s_cmp_lt_u32 s{cnt}, {SPIN_LIMIT}")
    g(f"s_cbranch_scc0 {ok_label}")
    g("s_sleep 1")
    g(f"s_branch {retry_label}")


STAMPS = False
DBG_BASE = 0x800000


def stamp(g, pair):
    if not STAMPS:
        return
    g(f"s_memrealtime s[{pair}:{pair+1}]")
    g("s_waitcnt lgkmcnt(0)")


def dump_stamps(g, pairs, slot0, tmpv=124, ta=96, tb=97):
    if not STAMPS:
        return
    g(f"s_lshl_b32 s{ta}, s{S_WG}, 11")
    g(f"s_lshl_b32 s{tb}, s{S_WAVE}, 7")
    g(f"s_add_u32 s{ta}, s{ta}, s{tb}")
    g(f"s_add_u32 s{ta}, s{ta}, {DBG_BASE + 8*slot0}")
    g(f"v_mov_b32 v{tmpv+2}, 0")
    g("s_mov_b64 exec, 1")
    for i, p in enumerate(pairs):
        g(f"v_mov_b32 v{tmpv}, s{p}")
        g(f"v_mov_b32 v{tmpv+1}, s{p+1}")
        g(f"buffer_store_dwordx2 v[{tmpv}:{tmpv+1}], v{tmpv+2}, s[{SRD_WS}:{SRD_WS+3}], s{ta} offen offset:{8*i}")
    g("s_mov_b64 exec, -1")


def lanecode(k):
    return ((k & 1) << 4) | (((k >> 1) & 1) << 3) | (((k >> 2) & 1) << 2)


def gen_prologue(g):
    g.comment("---- prologue: extra workgroups exit ----")
    g(f"s_cmp_ge_u32 s{S_WG}, {NWG}")
    g("s_cbranch_scc1 L_END")
    g(f"s_load_dwordx16 s[16:31], s[0:1], 0")
    g(f"s_load_dwordx8 s[32:39], s[0:1], 64")
    g(f"s_load_dwordx4 s[40:43], s[0:1], 96")
    g("v_lshrrev_b32 v1, 6, v0")
    g("v_and_b32 v0, 63, v0")
    g(f"v_readfirstlane_b32 s{S_WAVE}, v1")
    g("s_waitcnt lgkmcnt(0)")
    build_srd(g, SRD_WS, P_WS, hex(WS_BYTES))
    gen_chunk_params(g)
    g(f"s_cmp_eq_u32 s{S_WAVE}, 0")
    g("s_cbranch_scc1 L_AUX")


def gen_chunk_params(g):
    g(f"s_cmp_ge_u32 s{S_WG}, {NWG_A}")
    g("s_cbranch_scc1 L_KVB")
    g(f"s_lshr_b32 s45, s{S_WG}, 3")
    g(f"s_and_b32 s46, s{S_WG}, 7")
    g("s_lshl_b32 s47, s46, 8")
    g("s_add_u32 s47, s47, 6144")
    g("s_mov_b32 s92, 1")
    g("s_mov_b32 s93, 17")
    g("s_mov_b32 s101, s45")
    g(f"s_mov_b32 s{SRD_A}, s{P_AK}")
    g(f"s_mov_b32 s{SRD_A+1}, s{P_AK+1}")
    g(f"s_mov_b32 s{SRD_B}, s{P_AV}")
    g(f"s_mov_b32 s{SRD_B+1}, s{P_AV+1}")
    g("s_branch L_KVC")
    g.label("L_KVB")
    g(f"s_sub_u32 s96, s{S_WG}, {NWG_A}")
    g("s_mul_hi_u32 s45, s96, 0x0AAAAAAB")
    g("s_mul_i32 s46, s45, 24")
    g("s_sub_u32 s46, s96, s46")
    g("s_mul_i32 s47, s46, 341")
    g("s_min_u32 s92, s46, 8")
    g("s_add_u32 s47, s47, s92")
    g("s_cmp_lt_u32 s46, 8")
    g("s_cselect_b32 s92, 12, 11")
    g("s_mov_b32 s93, 22")
    g("s_add_u32 s101, s45, 8")
    g(f"s_mov_b32 s{SRD_A}, s{P_BK}")
    g(f"s_mov_b32 s{SRD_A+1}, s{P_BK+1}")
    g(f"s_mov_b32 s{SRD_B}, s{P_BV}")
    g(f"s_mov_b32 s{SRD_B+1}, s{P_BV+1}")
    g.label("L_KVC")


KREG0 = 8
VREG0 = KREG0 + 2 * NSLOT
Q0, Q1 = 100, 102
ACC = 104
SREG_S = [112, 113, 114]
V_KIDX = 115
PVT = [116, 120]
V_T = [2, 3, 4, 5]
V_M, V_L = 124, 125
V_TMP = 126


def kreg(j):
    return KREG0 + 2 * j


def vdreg(j):
    return VREG0 + 2 * j


def gen_kv(g, nt=False, window=14):
    g.comment("================= KV wave =================")
    g(f"s_sub_u32 s44, s{S_WAVE}, 1")
    g("s_mul_i32 s96, s93, s44")
    g("s_add_u32 s47, s47, s96")
    g("s_min_u32 s96, s44, s92")
    g("s_add_u32 s47, s47, s96")
    g("s_cmp_lt_u32 s44, s92")
    g("s_cselect_b32 s96, 1, 0")
    g("s_add_u32 s97, s93, s96")
    g("s_lshl_b32 s98, s45, 22")
    g("s_lshl_b32 s99, s47, 9")
    g("s_add_u32 s98, s98, s99")
    for srd in (SRD_A, SRD_B):
        g(f"s_add_u32 s{srd}, s{srd}, s98")
        g(f"s_addc_u32 s{srd+1}, s{srd+1}, 0")
        g(f"s_and_b32 s{srd+1}, s{srd+1}, 0xffff")
        g(f"s_lshl_b32 s{srd+2}, s97, 9")
        g(f"s_mov_b32 s{srd+3}, 0x00020000")
    g("s_movk_i32 s99, 4096")
    g("s_movk_i32 s100, 8192")
    g("v_lshlrev_b32 v1, 3, v0")
    ntm = " nt" if nt else ""
    loads = []
    for (srd, regf) in ((SRD_A, kreg), (SRD_B, vdreg)):
        for j in range(NSLOT):
            so = "0" if j < 8 else ("s99" if j < 16 else "s100")
            r = regf(j)
            loads.append(f"buffer_load_dwordx2 v[{r}:{r+1}], v1, s[{srd}:{srd+3}], {so} offen offset:{(j % 8) * 512}{ntm}")
    g("s_barrier")
    for l in loads[:window]:
        g(l)
    stamp(g, 46)
    g("v_bfe_u32 v2, v0, 2, 1")
    g("v_lshlrev_b32 v2, 2, v2")
    g("v_bfe_u32 v3, v0, 3, 1")
    g("v_lshlrev_b32 v3, 1, v3")
    g("v_bfe_u32 v4, v0, 4, 1")
    g(f"v_or_b32 v{V_KIDX}, v2, v3")
    g(f"v_or_b32 v{V_KIDX}, v{V_KIDX}, v4")
    for i in range(8):
        g(f"v_mov_b32 v{ACC+i}, 0")
    g("s_barrier")
    g(f"ds_read_b64 v[{Q0}:{Q0+1}], v1 offset:{Q_OFF}")
    g(f"ds_read_b64 v[{Q1}:{Q1+1}], v1 offset:{Q_OFF+512}")
    g("v_mov_b32 v6, 0")
    g(f"ds_read_b64 v[{V_TMP}:{V_TMP+1}], v6 offset:{NONCE_OFF}")
    g("s_waitcnt lgkmcnt(0)")
    g(f"v_readfirstlane_b32 s{S_NLO}, v{V_TMP}")
    g(f"v_readfirstlane_b32 s{S_NHI}, v{V_TMP+1}")
    stamp(g, 100)
    nload = 2 * NSLOT
    state = {"issued": window}

    def pump(target_issued):
        while state["issued"] < min(target_issued, nload):
            g(loads[state["issued"]])
            state["issued"] += 1

    nb = (NSLOT + 7) // 8
    for b in range(nb):
        slots = list(range(8 * b, min(8 * b + 8, NSLOT)))
        consumed = slots[-1] + 1
        g(f"s_waitcnt vmcnt({state['issued'] - consumed})")
        pump(consumed + window)
        qk_batch(g, slots, SREG_S[b])
    for b in range(nb):
        S = SREG_S[b]
        bf16_round(g, S, V_TMP)
        g(f"v_mul_f32 v{S}, 0x3d800000, v{S}")
        g(f"s_sub_u32 s96, s97, {8*b}")
        g(f"v_cmp_gt_u32 vcc, s96, v{V_KIDX}")
        g(f"v_mov_b32 v{V_TMP+1}, {NEGINF}")
        g(f"v_cndmask_b32 v{S}, v{V_TMP+1}, v{S}, vcc")
    g(f"v_max3_f32 v{V_M}, v{SREG_S[0]}, v{SREG_S[1]}, v{SREG_S[2]}")
    allreduce(g, "v_max_f32", V_M, V_TMP, bits=(2, 3, 4))
    for b in range(nb):
        S = SREG_S[b]
        g(f"v_sub_f32 v{S}, v{S}, v{V_M}")
        g(f"v_mul_f32 v{S}, {LOG2E}, v{S}")
        g(f"v_exp_f32 v{S}, v{S}")
    g(f"v_add_f32 v{V_L}, v{SREG_S[0]}, v{SREG_S[1]}")
    g(f"v_add_f32 v{V_L}, v{V_L}, v{SREG_S[2]}")
    allreduce(g, "v_add_f32", V_L, V_TMP, bits=(2, 3, 4))
    for j in range(NSLOT):
        b, k = j >> 3, j & 7
        g(f"v_readlane_b32 s{S_P+2*j}, v{SREG_S[b]}, {lanecode(k)}")
        g(f"v_readlane_b32 s{S_P+2*j+1}, v{SREG_S[b]}, {32 + lanecode(k)}")
    stamp(g, 4)
    for j in range(NSLOT):
        consumed = NSLOT + j + 1
        g(f"s_waitcnt vmcnt({state['issued'] - consumed})")
        pump(consumed + window)
        a = vdreg(j); T = PVT[j & 1]; sp = S_P + 2 * j
        g(f"v_lshlrev_b32 v{T}, 16, v{a}")
        g(f"v_and_b32 v{T+1}, 0xffff0000, v{a}")
        g(f"v_lshlrev_b32 v{T+2}, 16, v{a+1}")
        g(f"v_and_b32 v{T+3}, 0xffff0000, v{a+1}")
        g(f"v_pk_fma_f32 v[{ACC}:{ACC+1}], v[{T}:{T+1}], s[{sp}:{sp+1}], v[{ACC}:{ACC+1}] op_sel_hi:[1,0,1]")
        g(f"v_pk_fma_f32 v[{ACC+2}:{ACC+3}], v[{T+2}:{T+3}], s[{sp}:{sp+1}], v[{ACC+2}:{ACC+3}] op_sel_hi:[1,0,1]")
        g(f"v_pk_fma_f32 v[{ACC+4}:{ACC+5}], v[{T}:{T+1}], s[{sp}:{sp+1}], v[{ACC+4}:{ACC+5}] op_sel:[0,1,0] op_sel_hi:[1,1,1]")
        g(f"v_pk_fma_f32 v[{ACC+6}:{ACC+7}], v[{T+2}:{T+3}], s[{sp}:{sp+1}], v[{ACC+6}:{ACC+7}] op_sel:[0,1,0] op_sel_hi:[1,1,1]")
    assert state["issued"] == nload
    stamp(g, 98)
    g("s_lshl_b32 s96, s44, 11")
    g("v_lshlrev_b32 v2, 4, v0")
    g("v_add_u32 v2, s96, v2")
    g(f"ds_write_b128 v2, v[{ACC}:{ACC+3}] offset:{PART_OFF}")
    g(f"ds_write_b128 v2, v[{ACC+4}:{ACC+7}] offset:{PART_OFF+1024}")
    g("s_lshl_b32 s96, s44, 4")
    g("v_lshrrev_b32 v3, 5, v0")
    g("v_lshlrev_b32 v3, 3, v3")
    g("v_add_u32 v3, s96, v3")
    g(f"ds_write_b64 v3, v[{V_M}:{V_M+1}] offset:{ML_OFF}")
    g("s_waitcnt lgkmcnt(0)")
    g("s_barrier")
    dump_stamps(g, [46, 100, 4, 98], 0, ta=44, tb=45)
    g("s_branch L_TAIL")


def qk_batch(g, slots, Sdst):
    n = len(slots)
    for idx, j in enumerate(slots):
        a = kreg(j); b = a + 1; T = V_T[idx % len(V_T)]
        g(f"v_dot2_f32_bf16 v{T}, v{b}, v{Q0+1}, 0")
        g(f"v_dot2_f32_bf16 v{b}, v{b}, v{Q1+1}, 0")
        g(f"v_dot2_f32_bf16 v{b}, v{a}, v{Q1}, v{b}")
        g(f"v_dot2_f32_bf16 v{a}, v{a}, v{Q0}, v{T}")
    for j in slots:
        a = kreg(j); b = a + 1
        g(f"v_permlane32_swap_b32 v{a}, v{b}")
        g(f"v_add_f32 v{a}, v{a}, v{b}")
    us = []
    for i in range(0, n, 2):
        a = kreg(slots[i])
        if i + 1 < n:
            b = kreg(slots[i + 1])
        else:
            b = a + 1
            g(f"v_mov_b32 v{b}, v{a}")
        g(f"v_permlane16_swap_b32 v{a}, v{b}")
        g(f"v_add_f32 v{a}, v{a}, v{b}")
        us.append(a)
    ws = []
    for i in range(0, len(us), 2):
        a = us[i]
        g(f"v_add_f32_dpp v{a}, v{a}, v{a} row_ror:8 row_mask:0xf bank_mask:0x3")
        if i + 1 < len(us):
            b = us[i + 1]
            g(f"v_add_f32_dpp v{a}, v{b}, v{b} row_ror:8 row_mask:0xf bank_mask:0xc")
        ws.append(a)
    a = ws[0]
    g(f"v_add_f32_dpp v{a}, v{a}, v{a} row_shl:4 row_mask:0xf bank_mask:0x5")
    if len(ws) > 1:
        b = ws[1]
        g(f"v_add_f32_dpp v{a}, v{b}, v{b} row_shr:4 row_mask:0xf bank_mask:0xa")
    g(f"v_add_f32_dpp v{Sdst}, v{a}, v{a} quad_perm:[1,0,3,2] {ALLM}")
    g(f"v_add_f32_dpp v{Sdst}, v{Sdst}, v{Sdst} quad_perm:[2,3,0,1] {ALLM}")


if __name__ == "__main__":
    pass
```

```python
import sys
from emit import Gen
from gen import *

DMA_NT = ""
WQS_OFF = PART_OFF


def gen_aux(g):
    g.label("L_AUX")
    stamp(g, 56)
    g("s_memrealtime s[96:97]")
    build_srd(g, SRD_B, P_DBG, "256")
    g(f"s_lshr_b32 s44, s{S_WG}, 7")
    g("s_cmp_eq_u32 s44, 0")
    g(f"s_cselect_b32 s{SRD_A}, s{P_AWQ}, s{P_BWQ}")
    g(f"s_cselect_b32 s{SRD_A+1}, s{P_AWQ+1}, s{P_BWQ+1}")
    g(f"s_and_b32 s{SRD_A+1}, s{SRD_A+1}, 0xffff")
    g(f"s_mov_b32 s{SRD_A+2}, 3670016")
    g(f"s_mov_b32 s{SRD_A+3}, 0x00020000")
    build_srd(g, 48, P_AX, "896")
    g("v_lshrrev_b32 v1, 2, v0")
    g("v_and_b32 v2, 3, v0")
    g("v_mul_u32_u24 v7, 0x38000, v1")
    g("v_lshl_add_u32 v7, v2, 4, v7")
    g("v_mul_u32_u24 v8, 56, v1")
    g("v_mov_b32 v28, 0")
    g("s_waitcnt lgkmcnt(0)")
    g("s_or_b32 s96, s96, 1")
    g(f"s_cmp_lg_u32 s{S_WG}, 0")
    g("s_cbranch_scc1 L_NONCE_POLL0")
    g("v_mov_b32 v24, s96")
    g("v_mov_b32 v25, s97")
    g("s_mov_b64 exec, 1")
    g(f"buffer_store_dwordx2 v[24:25], v28, s[{SRD_B}:{SRD_B+3}], 0 offen sc1")
    g("s_mov_b64 exec, -1")
    g.label("L_NONCE_POLL0")
    g(f"buffer_load_dwordx4 v[24:27], v28, s[{SRD_B}:{SRD_B+3}], 0 offen sc1")
    for i in range(7):
        g(f"buffer_load_dwordx2 v[{10+2*i}:{11+2*i}], v8, s[48:51], 0 offen offset:{8*i}")
    g(f"s_and_b32 s46, s{S_WG}, 127")
    g("s_lshl_b32 s46, s46, 6")
    for t in range(28):
        g(f"s_mov_b32 m0, {WQS_OFF + 1024*t}")
        g(f"buffer_load_dwordx4 v7, s[{SRD_A}:{SRD_A+3}], s46 offen{DMA_NT} lds")
        if t < 27:
            g("s_add_u32 s46, s46, 8192")
    g("s_barrier")
    g("v_lshlrev_b32 v9, 4, v0")
    g("s_waitcnt vmcnt(0)")
    stamp(g, 58)
    g("s_mov_b32 s53, 0")
    g.label("L_NONCE_CHK")
    g("v_readfirstlane_b32 s98, v24")
    g("v_readfirstlane_b32 s99, v25")
    g("s_cmp_eq_u64 s[98:99], 0")
    g("s_cbranch_scc0 L_NONCE_OK")
    g("s_add_u32 s53, s53, 1")
    g(f"s_cmp_lt_u32 s53, {SPIN_LIMIT}")
    g("s_cbranch_scc0 L_NONCE_OK")
    g(f"buffer_load_dwordx4 v[24:27], v28, s[{SRD_B}:{SRD_B+3}], 0 offen sc1")
    g("s_waitcnt vmcnt(0)")
    g("s_branch L_NONCE_CHK")
    g.label("L_NONCE_OK")
    g(f"s_mov_b32 s{S_NLO}, s98")
    g(f"s_mov_b32 s{S_NHI}, s99")
    g(f"v_mov_b32 v24, s{S_NLO}")
    g(f"v_mov_b32 v25, s{S_NHI}")
    g(f"ds_write_b64 v28, v[24:25] offset:{NONCE_OFF}")
    for i in range(8):
        g(f"v_mov_b32 v{80+i}, 0")
    depth = 4
    for t in range(min(depth, 28)):
        W = 32 + 4 * (t % depth)
        g(f"ds_read_b128 v[{W}:{W+3}], v9 offset:{WQS_OFF + 1024*t}")
    for t in range(28):
        W = 32 + 4 * (t % depth)
        outstanding = min(depth, 28 - t)
        g(f"s_waitcnt lgkmcnt({outstanding - 1})")
        xd = 10 + (t >> 1)
        if t & 1:
            g(f"v_and_b32 v90, 0xffff0000, v{xd}")
        else:
            g(f"v_lshlrev_b32 v90, 16, v{xd}")
        for k in range(4):
            g(f"v_lshlrev_b32 v{48+2*k}, 16, v{W+k}")
            g(f"v_and_b32 v{49+2*k}, 0xffff0000, v{W+k}")
        if t + depth < 28:
            g(f"ds_read_b128 v[{W}:{W+3}], v9 offset:{WQS_OFF + 1024*(t+depth)}")
        for k in range(4):
            g(f"v_pk_fma_f32 v[{80+2*k}:{81+2*k}], v[{48+2*k}:{49+2*k}], v[90:91], v[{80+2*k}:{81+2*k}] op_sel_hi:[1,0,1]")
    g("v_lshlrev_b32 v3, 7, v1")
    g("v_lshl_add_u32 v3, v2, 5, v3")
    g(f"ds_write_b128 v3, v[80:83] offset:{QS_OFF}")
    g(f"ds_write_b128 v3, v[84:87] offset:{QS_OFF+16}")
    g("v_and_b32 v4, 15, v0")
    g("v_lshlrev_b32 v5, 3, v4")
    g("s_waitcnt lgkmcnt(0)")
    for i in range(16):
        g(f"ds_read_b64 v[{32+2*i}:{33+2*i}], v5 offset:{QS_OFF + 128*i}")
    g("s_waitcnt lgkmcnt(0)")
    for step in (8, 4, 2, 1):
        for i in range(step):
            g(f"v_pk_add_f32 v[{32+2*i}:{33+2*i}], v[{32+2*i}:{33+2*i}], v[{32+2*(i+step)}:{33+2*(i+step)}]")
    g("v_cvt_pk_bf16_f32 v64, v32, v33")
    g("v_mov_b32 v65, 0")
    g(f"v_mov_b32 v66, s{S_NLO}")
    g(f"v_mov_b32 v67, s{S_NHI}")
    g(f"s_lshl_b32 s46, s{S_WG}, 8")
    if QREC:
        g(f"s_add_u32 s46, s46, {QREC}")
    g("s_mov_b32 exec_lo, 0xffff")
    g("s_mov_b32 exec_hi, 0")
    g(f"buffer_store_dwordx4 v[64:67], v9, s[{SRD_WS}:{SRD_WS+3}], s46 offen sc1")
    g("s_mov_b64 exec, -1")
    stamp(g, 60)
    g("s_lshl_b32 s52, s101, 12")
    if QREC:
        g(f"s_add_u32 s52, s52, {QREC}")
    g("s_mov_b32 s53, 0")
    g.label("L_QPOLL")
    for j in range(4):
        g(f"buffer_load_dwordx4 v[{32+4*j}:{35+4*j}], v9, s[{SRD_WS}:{SRD_WS+3}], s52 offen offset:{1024*j} sc1")
    g("s_waitcnt vmcnt(0)")
    for j in range(4):
        d = 48 if j == 0 else 49
        g(f"v_xor_b32 v{d}, s{S_NLO}, v{34+4*j}")
        g(f"v_xor_b32 v50, s{S_NHI}, v{35+4*j}")
        g(f"v_or_b32 v{d}, v{d}, v50")
        if j:
            g("v_or_b32 v48, v48, v49")
    g("v_cmp_ne_u32 vcc, 0, v48")
    g("s_cmp_lg_u64 vcc, 0")
    spin_check(g, 53, "L_QOK", "L_QPOLL", "q")
    g.label("L_QOK")
    stamp(g, 62)
    g("v_lshlrev_b32 v5, 2, v0")
    for j in range(4):
        g(f"ds_write_b32 v5, v{32+4*j} offset:{Q_OFF + 256*j}")
    g("s_waitcnt lgkmcnt(0)")
    g("s_barrier")
    g(f"s_cmp_ge_u32 s{S_WG}, {NTASK}")
    g("s_cbranch_scc1 L_AUX_NOWO")
    g(f"s_cmp_ge_u32 s{S_WG}, 112")
    g("s_cselect_b32 s44, 1, 0")
    g("s_mul_i32 s45, s44, 112")
    g(f"s_sub_u32 s45, s{S_WG}, s45")
    g("s_mul_hi_u32 s46, s45, 0x24924925")
    g("s_mul_i32 s47, s46, 7")
    g("s_sub_u32 s47, s45, s47")
    g("s_cmp_eq_u32 s44, 0")
    g(f"s_cselect_b32 s{SRD_A}, s{P_AWO}, s{P_BWO}")
    g(f"s_cselect_b32 s{SRD_A+1}, s{P_AWO+1}, s{P_BWO+1}")
    g(f"s_and_b32 s{SRD_A+1}, s{SRD_A+1}, 0xffff")
    g(f"s_mov_b32 s{SRD_A+2}, 3670016")
    g(f"s_mov_b32 s{SRD_A+3}, 0x00020000")
    g("s_mul_i32 s52, s46, 229376")
    g("s_lshl_b32 s53, s47, 7")
    g("s_add_u32 s52, s52, s53")
    g("v_lshrrev_b32 v1, 3, v0")
    g("v_mul_u32_u24 v7, 896, v1")
    g("v_and_b32 v2, 7, v0")
    g("v_lshl_add_u32 v7, v2, 4, v7")
    for i in range(32):
        g(f"s_mov_b32 m0, {WO_OFF + 1024*i}")
        g(f"buffer_load_dwordx4 v7, s[{SRD_A}:{SRD_A+3}], s52 offen{DMA_NT} lds")
        if i < 31:
            g("s_add_u32 s52, s52, 7168")
    g.label("L_AUX_NOWO")
    g(f"s_cmp_lt_u32 s{S_WG}, {NTASK}")
    g("s_cbranch_scc1 L_AUX_NOGATE")
    g(f"s_cmp_ge_u32 s{S_WG}, {NTASK+7}")
    g("s_cbranch_scc1 L_AUX_NOGATE")
    build_srd(g, 52, P_GW, "896")
    g("v_lshlrev_b32 v5, 1, v0")
    for i in range(7):
        g(f"buffer_load_ushort v{32+i}, v5, s[48:51], 0 offen offset:{128*i}")
        g(f"buffer_load_ushort v{40+i}, v5, s[52:55], 0 offen offset:{128*i}")
    g("v_mov_b32 v48, 0")
    g("s_waitcnt vmcnt(0)")
    for i in range(7):
        g(f"v_lshlrev_b32 v{32+i}, 16, v{32+i}")
        g(f"v_lshlrev_b32 v{40+i}, 16, v{40+i}")
        g(f"v_mul_f32 v{32+i}, v{32+i}, v{40+i}")
        bf16_round(g, 32 + i, 49)
        g(f"v_add_f32 v48, v48, v{32+i}")
    allreduce(g, "v_add_f32", 48, 49)
    bf16_round(g, 48, 49)
    g(f"v_mul_f32 v48, {LOG2E}, v48")
    g("v_sub_f32 v48, 0, v48")
    g("v_exp_f32 v48, v48")
    g("v_add_f32 v48, 1.0, v48")
    g("v_rcp_f32 v48, v48")
    bf16_round(g, 48, 49)
    g("v_readfirstlane_b32 s93, v48")
    g.label("L_AUX_NOGATE")
    g("s_waitcnt vmcnt(0)")
    stamp(g, 64)
    g("s_barrier")
    stamp(g, 66)
    dump_stamps(g, [56, 58, 60, 62, 64, 66], 0)


def pk_sel(s):
    if s % 2 == 0:
        return f"s[{s}:{s+1}]", "op_sel_hi:[1,0,1]"
    return f"s[{s-1}:{s}]", "op_sel:[0,1,0] op_sel_hi:[1,1,1]"


def gen_tail(g):
    g.label("L_TAIL")
    g(f"s_cmp_ge_u32 s{S_WAVE}, 4")
    g("s_cbranch_scc1 L_NOCOMB")
    g(f"s_lshr_b32 s44, s{S_WAVE}, 1")
    g(f"s_and_b32 s45, s{S_WAVE}, 1")
    g("v_min_u32 v1, 14, v0")
    g("v_lshlrev_b32 v1, 4, v1")
    g("s_lshl_b32 s46, s44, 3")
    g("v_add_u32 v1, s46, v1")
    g(f"ds_read_b64 v[2:3], v1 offset:{ML_OFF}")
    g("s_lshl_b32 s46, s45, 9")
    g("s_lshl_b32 s47, s44, 10")
    g("s_add_u32 s46, s46, s47")
    g("v_lshlrev_b32 v7, 3, v0")
    g("v_add_u32 v7, s46, v7")
    for i in range(NKV):
        g(f"ds_read_b64 v[{16+2*i}:{17+2*i}], v7 offset:{PART_OFF + 2048*i}")
    g("s_waitcnt lgkmcnt(15)")
    g("v_cmp_gt_u32 vcc, 15, v0")
    g("v_mov_b32 v4, v2")
    allreduce(g, "v_max_f32", 4, 5)
    g("v_sub_f32 v5, v2, v4")
    g(f"v_mul_f32 v5, {LOG2E}, v5")
    g("v_exp_f32 v5, v5")
    g("v_cndmask_b32 v5, 0, v5, vcc")
    g("v_mul_f32 v6, v5, v3")
    allreduce(g, "v_add_f32", 6, 12)
    for i in range(NKV):
        g(f"v_readlane_b32 s{48+i}, v5, {i}")
    g("s_waitcnt lgkmcnt(0)")
    g("v_mul_f32 v8, s48, v16")
    g("v_mul_f32 v9, s48, v17")
    for i in range(1, NKV):
        g(f"v_fma_f32 v8, v{16+2*i}, s{48+i}, v8")
        g(f"v_fma_f32 v9, v{17+2*i}, s{48+i}, v9")
    g(f"v_mov_b32 v10, s{S_NLO}")
    g(f"v_mov_b32 v11, s{S_NHI}")
    g("v_lshlrev_b32 v13, 4, v0")
    g(f"s_lshl_b32 s47, s{S_WG}, 13")
    g(f"s_add_u32 s47, s47, {PREC}")
    g("s_lshl_b32 s46, s44, 11")
    g("s_add_u32 s52, s47, s46")
    g("s_lshl_b32 s46, s45, 10")
    g("s_add_u32 s52, s52, s46")
    g(f"buffer_store_dwordx4 v[8:11], v13, s[{SRD_WS}:{SRD_WS+3}], s52 offen sc1")
    g("s_cmp_lg_u32 s45, 0")
    g("s_cbranch_scc1 L_NOCOMB")
    g("v_mov_b32 v16, v4")
    g("v_mov_b32 v17, v6")
    g(f"v_mov_b32 v18, s{S_NLO}")
    g(f"v_mov_b32 v19, s{S_NHI}")
    g("s_lshl_b32 s46, s44, 4")
    g("s_add_u32 s52, s47, s46")
    g("s_add_u32 s52, s52, 4096")
    g("s_mov_b64 exec, 1")
    g(f"buffer_store_dwordx4 v[16:19], v13, s[{SRD_WS}:{SRD_WS+3}], s52 offen sc1")
    g("s_mov_b64 exec, -1")
    g.label("L_NOCOMB")
    stamp(g, 88)
    g(f"s_cmp_lt_u32 s{S_WG}, {NTASK}")
    g("s_cbranch_scc1 L_TASK")
    g(f"s_cmp_lt_u32 s{S_WG}, {NTASK+7}")
    g("s_cbranch_scc1 L_RED")
    g("s_branch L_END")


def gen_task(g):
    g.label("L_TASK")
    g(f"s_cmp_ge_u32 s{S_WG}, 112")
    g("s_cselect_b32 s44, 1, 0")
    g("s_mul_i32 s45, s44, 112")
    g(f"s_sub_u32 s45, s{S_WG}, s45")
    g("s_mul_hi_u32 s46, s45, 0x24924925")
    g("s_mul_i32 s47, s46, 7")
    g("s_sub_u32 s47, s45, s47")
    g("s_lshr_b32 s52, s46, 1")
    g("s_and_b32 s53, s46, 1")
    g("s_lshl_b32 s54, s52, 3")
    g("s_mul_i32 s55, s52, 24")
    g(f"s_add_u32 s55, s55, {NWG_A}")
    g("s_cmp_eq_u32 s44, 0")
    g("s_cselect_b32 s54, s54, s55")
    g("s_cselect_b32 s55, 8, 24")
    g("s_lshl_b32 s56, s54, 13")
    g(f"s_add_u32 s56, s56, {PREC}")
    g("s_lshl_b32 s57, s55, 13")
    g(f"s_add_u32 s{SRD_A}, s{P_WS}, s56")
    g(f"s_addc_u32 s{SRD_A+1}, s{P_WS+1}, 0")
    g(f"s_and_b32 s{SRD_A+1}, s{SRD_A+1}, 0xffff")
    g(f"s_mov_b32 s{SRD_A+2}, s57")
    g(f"s_mov_b32 s{SRD_A+3}, 0x00020000")
    g("v_lshrrev_b32 v1, 3, v0")
    g("v_lshlrev_b32 v2, 13, v1")
    g("v_and_b32 v3, 7, v0")
    g("v_lshl_add_u32 v3, v3, 4, v2")
    g("s_lshl_b32 s57, s53, 11")
    g(f"s_lshl_b32 s58, s{S_WAVE}, 7")
    g("s_add_u32 s57, s57, s58")
    g("s_lshl_b32 s58, s53, 4")
    g("s_add_u32 s58, s58, 4096")
    for j in range(4):
        g(f"s_sub_i32 s59, s55, {8*j}")
        g(f"v_cmp_gt_i32 s[{60+2*j}:{61+2*j}], s59, v1")
    g("s_mov_b32 s59, 0")
    g.label("L_TPOLL")
    for j in range(4):
        g(f"s_add_u32 s68, s58, {j*65536}")
        g(f"buffer_load_dwordx4 v[{12+8*j}:{15+8*j}], v2, s[{SRD_A}:{SRD_A+3}], s68 offen sc1")
    g("s_mov_b64 s[70:71], 0")
    g("s_waitcnt vmcnt(0)")
    for j in range(4):
        g(f"v_xor_b32 v44, s{S_NLO}, v{14+8*j}")
        g(f"v_xor_b32 v45, s{S_NHI}, v{15+8*j}")
        g("v_or_b32 v44, v44, v45")
        g("v_cmp_ne_u32 vcc, 0, v44")
        g(f"s_and_b64 s[72:73], vcc, s[{60+2*j}:{61+2*j}]")
        g("s_or_b64 s[70:71], s[70:71], s[72:73]")
    g("s_cmp_lg_u64 s[70:71], 0")
    spin_check(g, 59, "L_TML_OK", "L_TPOLL", "ml")
    g.label("L_TML_OK")
    stamp(g, 90)
    for j in range(4):
        g(f"s_add_u32 s68, s57, {j*65536}")
        g(f"buffer_load_dwordx4 v[{8+8*j}:{11+8*j}], v3, s[{SRD_A}:{SRD_A+3}], s68 offen sc1")
    g("s_mov_b64 s[70:71], 0")
    g("s_waitcnt vmcnt(0)")
    for j in range(4):
        g(f"v_xor_b32 v44, s{S_NLO}, v{10+8*j}")
        g(f"v_xor_b32 v45, s{S_NHI}, v{11+8*j}")
        g("v_or_b32 v44, v44, v45")
        g("v_cmp_ne_u32 vcc, 0, v44")
        g(f"s_and_b64 s[72:73], vcc, s[{60+2*j}:{61+2*j}]")
        g("s_or_b64 s[70:71], s[70:71], s[72:73]")
    g("s_cmp_lg_u64 s[70:71], 0")
    spin_check(g, 59, "L_TOK", "L_TPOLL", "pl")
    g.label("L_TOK")
    stamp(g, 96)
    g(f"v_mov_b32 v44, {NEGINF}")
    for j in range(4):
        g(f"v_cndmask_b32 v{12+8*j}, v44, v{12+8*j}, s[{60+2*j}:{61+2*j}]")
    g("v_max3_f32 v45, v12, v20, v28")
    g("v_max_f32 v45, v45, v36")
    allreduce(g, "v_max_f32", 45, 46, bits=(3, 4, 5))
    for j in range(4):
        g(f"v_sub_f32 v{46+j}, v{12+8*j}, v45")
        g(f"v_mul_f32 v{46+j}, {LOG2E}, v{46+j}")
        g(f"v_exp_f32 v{46+j}, v{46+j}")
    g("v_mul_f32 v50, v46, v8")
    g("v_mul_f32 v51, v46, v9")
    g("v_mul_f32 v52, v46, v13")
    for j in range(1, 4):
        g(f"v_fma_f32 v50, v{46+j}, v{8+8*j}, v50")
        g(f"v_fma_f32 v51, v{46+j}, v{9+8*j}, v51")
        g(f"v_fma_f32 v52, v{46+j}, v{13+8*j}, v52")
    for x in (50, 51, 52):
        allreduce(g, "v_add_f32", x, 53, bits=(3, 4, 5))
    g("v_rcp_f32 v52, v52")
    g("v_mul_f32 v50, v50, v52")
    g("v_mul_f32 v51, v51, v52")
    bf16_round(g, 50, 53)
    bf16_round(g, 51, 53)
    g(f"s_lshl_b32 s68, s{S_WAVE}, 11")
    g("v_lshlrev_b32 v54, 1, v0")
    g("v_add_u32 v54, s68, v54")
    for d in range(16):
        g(f"ds_read_u16 v{56+d}, v54 offset:{WO_OFF + 128*d}")
    for i in range(8):
        g(f"v_readlane_b32 s{72+2*i}, v50, {i}")
        g(f"v_readlane_b32 s{73+2*i}, v51, {i}")
    g("v_mov_b32 v55, 0")
    for d in range(16):
        g(f"s_waitcnt lgkmcnt({15-d})")
        g(f"v_lshlrev_b32 v{56+d}, 16, v{56+d}")
        g(f"v_fmac_f32 v55, s{72+d}, v{56+d}")
    g(f"s_lshl_b32 s68, s{S_WAVE}, 8")
    g("v_lshlrev_b32 v54, 2, v0")
    g("v_add_u32 v53, s68, v54")
    g(f"ds_write_b32 v53, v55 offset:{RED_OFF}")
    g("s_waitcnt lgkmcnt(0)")
    g("s_barrier")
    stamp(g, 98)
    dump_stamps(g, [88, 90, 96, 98], 8, tmpv=100, ta=68, tb=69)
    g(f"s_cmp_lg_u32 s{S_WAVE}, 0")
    g("s_cbranch_scc1 L_END")
    for i in range(16):
        g(f"ds_read_b32 v{56+i}, v54 offset:{RED_OFF + 256*i}")
    g("s_waitcnt lgkmcnt(0)")
    for step in (8, 4, 2, 1):
        for i in range(step):
            g(f"v_add_f32 v{56+i}, v{56+i}, v{56+i+step}")
    g("v_mov_b32 v60, v56")
    g(f"v_mov_b32_dpp v61, v56 quad_perm:[1,0,3,2] {ALLM}")
    g(f"v_mov_b32 v62, s{S_NLO}")
    g(f"v_mov_b32 v63, s{S_NHI}")
    g("v_lshlrev_b32 v54, 3, v0")
    g("s_lshl_b32 s68, s47, 14")
    g("s_lshl_b32 s69, s44, 4")
    g("s_add_u32 s69, s69, s46")
    g("s_lshl_b32 s69, s69, 9")
    g("s_add_u32 s68, s68, s69")
    g(f"s_add_u32 s68, s68, {OREC}")
    g("s_mov_b32 exec_lo, 0x55555555")
    g("s_mov_b32 exec_hi, 0x55555555")
    g(f"buffer_store_dwordx4 v[60:63], v54, s[{SRD_WS}:{SRD_WS+3}], s68 offen sc1")
    g("s_mov_b64 exec, -1")
    g("s_branch L_END")


def gen_reducer(g):
    g.label("L_RED")
    g(f"s_sub_u32 s44, s{S_WG}, {NTASK}")
    g("s_lshl_b32 s45, s44, 14")
    g(f"s_lshl_b32 s46, s{S_WAVE}, 10")
    g("s_add_u32 s45, s45, s46")
    g(f"s_add_u32 s45, s45, {OREC}")
    g("v_lshlrev_b32 v1, 4, v0")
    g("s_mov_b32 s47, 0")
    g.label("L_RPOLL")
    g(f"buffer_load_dwordx4 v[4:7], v1, s[{SRD_WS}:{SRD_WS+3}], s45 offen sc1")
    g("s_waitcnt vmcnt(0)")
    g(f"v_xor_b32 v8, s{S_NLO}, v6")
    g(f"v_xor_b32 v9, s{S_NHI}, v7")
    g("v_or_b32 v8, v8, v9")
    g("v_cmp_ne_u32 vcc, 0, v8")
    g("s_cmp_lg_u64 vcc, 0")
    spin_check(g, 47, "L_ROK", "L_RPOLL", "r")
    g.label("L_ROK")
    stamp(g, 90)
    allreduce(g, "v_add_f32", 4, 8, bits=(5,))
    allreduce(g, "v_add_f32", 5, 8, bits=(5,))
    g("v_and_b32 v2, 31, v0")
    g("v_lshlrev_b32 v2, 3, v2")
    g(f"s_lshl_b32 s46, s{S_WAVE}, 8")
    g("v_add_u32 v3, s46, v2")
    g(f"ds_write_b64 v3, v[4:5] offset:{FIN_OFF}")
    g("s_waitcnt lgkmcnt(0)")
    g("s_barrier")
    stamp(g, 96)
    dump_stamps(g, [88, 90, 96], 8, tmpv=100, ta=68, tb=69)
    g(f"s_cmp_lg_u32 s{S_WAVE}, 0")
    g("s_cbranch_scc1 L_END")
    for i in range(16):
        g(f"ds_read_b64 v[{8+2*i}:{9+2*i}], v2 offset:{FIN_OFF + 256*i}")
    g("s_waitcnt lgkmcnt(0)")
    for base in (8, 24):
        for step in (4, 2, 1):
            for i in range(step):
                g(f"v_pk_add_f32 v[{base+2*i}:{base+2*i+1}], v[{base+2*i}:{base+2*i+1}], v[{base+2*(i+step)}:{base+2*(i+step)+1}]")
    g("v_mov_b32 v40, s93")
    g("v_sub_f32 v41, 1.0, v40")
    bf16_round(g, 41, 42)
    for (a, b) in ((8, 24), (9, 25)):
        bf16_round(g, a, 42)
        bf16_round(g, b, 42)
        g(f"v_mul_f32 v{a}, v40, v{a}")
        bf16_round(g, a, 42)
        g(f"v_mul_f32 v{b}, v41, v{b}")
        bf16_round(g, b, 42)
        g(f"v_add_f32 v{a}, v{a}, v{b}")
    g("v_cvt_pk_bf16_f32 v43, v8, v9")
    build_srd(g, SRD_A, P_OUT, "896")
    g("s_lshl_b32 s46, s44, 7")
    g("v_lshlrev_b32 v3, 2, v0")
    g("s_mov_b32 exec_lo, -1")
    g("s_mov_b32 exec_hi, 0")
    g(f"buffer_store_dword v43, v3, s[{SRD_A}:{SRD_A+3}], s46 offen")
    g("s_mov_b64 exec, -1")


HEADER = """; Kernarg layout for this problem (112 bytes, ptrs only, base s[0:1]):
;   offset   0: d_in[0] A_x  shape=(1, 1, 448) dtype=bfloat16 strides=(896, 896, 2) contiguous=True
;   offset   8: d_in[1] A_k_cache  shape=(1, 8, 8192, 256) dtype=bfloat16 strides=(33554432, 4194304, 512, 2) contiguous=True
;   offset  16: d_in[2] A_v_cache  shape=(1, 8, 8192, 256) dtype=bfloat16 strides=(33554432, 4194304, 512, 2) contiguous=True
;   offset  24: d_in[3] A_wq  shape=(448, 4096) dtype=bfloat16 strides=(8192, 2) contiguous=True
;   offset  32: d_in[4] A_wo  shape=(4096, 448) dtype=bfloat16 strides=(896, 2) contiguous=True
;   offset  40: d_in[5] B_x  shape=(1, 1, 448) dtype=bfloat16 strides=(896, 896, 2) contiguous=True
;   offset  48: d_in[6] B_k_cache  shape=(1, 8, 8192, 256) dtype=bfloat16 strides=(33554432, 4194304, 512, 2) contiguous=True
;   offset  56: d_in[7] B_v_cache  shape=(1, 8, 8192, 256) dtype=bfloat16 strides=(33554432, 4194304, 512, 2) contiguous=True
;   offset  64: d_in[8] B_wq  shape=(448, 4096) dtype=bfloat16 strides=(8192, 2) contiguous=True
;   offset  72: d_in[9] B_wo  shape=(4096, 448) dtype=bfloat16 strides=(896, 2) contiguous=True
;   offset  80: d_in[10] gate_w  shape=(448,) dtype=bfloat16 strides=(2,) contiguous=True
; @launch grid=({nwg},1,1) block=(1024,1,1) lds={lds}
;
.amdgcn_target "amdgcn-amd-amdhsa--gfx950"
.text
.globl {name}_kernel
.p2align 8
.type {name}_kernel,@function
{name}_kernel:
"""

FOOTER = """L_END:
    s_endpgm
.section .rodata,"a"
.p2align 6
.amdhsa_kernel {name}_kernel
  .amdhsa_next_free_vgpr 128
  .amdhsa_next_free_sgpr 102
  .amdhsa_accum_offset 128
  .amdhsa_group_segment_fixed_size 0
  .amdhsa_kernarg_size 112
  .amdhsa_user_sgpr_count 2
  .amdhsa_user_sgpr_kernarg_segment_ptr 1
  .amdhsa_system_sgpr_workgroup_id_x 1
.end_amdhsa_kernel
"""


def build(nt=False, window=23):
    g = Gen()
    gen_prologue(g)
    gen_kv(g, nt=nt, window=window)
    gen_aux(g)
    gen_tail(g)
    gen_task(g)
    gen_reducer(g)
    txt = HEADER.format(nwg=NWG, lds=LDS_BYTES, name=NAME) + g.text() + FOOTER.format(name=NAME)
    return txt, g


if __name__ == "__main__":
    out = sys.argv[1] if len(sys.argv) > 1 else f"cdna_kernels/{NAME}.s"
    if "stamps" in sys.argv[2:]:
        import gen
        gen.STAMPS = True
        globals()["STAMPS"] = True
    if "dmant" in sys.argv[2:]:
        globals()["DMA_NT"] = " nt"
    win = [int(a[1:]) for a in sys.argv[2:] if a.startswith("w") and a[1:].isdigit()]
    txt, g = build(nt=("nt" in sys.argv[2:]), window=(win[0] if win else 23))
    open(out, "w").write(txt)
    print(f"wrote {out}: {g.count} instructions, {g.nops_added} nops inserted")
```
